```python
import torch

def _softmax(x, axis=-1):
    return torch.softmax(x, dim=axis)
def _gelu(x):
    return torch.nn.functional.gelu(x, approximate="tanh")
def _silu(x):
    return torch.nn.functional.silu(x)
def _sigmoid(x):
    return torch.sigmoid(x)
def _layernorm(x, axis=-1, eps=1e-5):
    m = x.mean(dim=axis, keepdim=True)
    v = x.var(dim=axis, keepdim=True, unbiased=False)
    return (x - m) / torch.sqrt(v + eps)
def _scatter_add(tgt, idx, src, axis=0):
    return tgt.clone().index_add_(axis, idx, src)
def _segment_sum(src, seg, n):
    out = torch.zeros((n,) + src.shape[1:], dtype=src.dtype)
    return out.index_add_(0, seg, src)
def _pad(x, pw):
    flat = tuple(v for pair in reversed(pw) for v in pair)
    return torch.nn.functional.pad(x, flat)

kernel_name = 'concat_heads__sliding_local_dilated__spectral_fnet__prompt'

def setup_inputs():

    _w = (lambda a: (lambda t: t.to(torch.bfloat16) if t.is_floating_point() else t)(torch.as_tensor(a)))
    def _A_setup():
        B, S, D = 1, 2048, 512
        return {
            "x": _w((lambda *s: torch.randn(*s, dtype=torch.bfloat16) * 0.2)(B, S, D)),
            "wqkv": _w((lambda *s: torch.randn(*s, dtype=torch.bfloat16) * 0.8)(D, 3 * D)),
            "wo": _w((lambda *s: torch.randn(*s, dtype=torch.bfloat16) * 0.2)(D, D)),
        }
    _A_in = _A_setup()

    def _B_setup():
        B, S, D = 1, 2048, 512
        ns = torch.arange(S)[:, None] * torch.arange(S)[None, :]
        nd = torch.arange(D)[:, None] * torch.arange(D)[None, :]
        Ws_re = torch.cos(-2.0 * torch.pi * ns / S).to(float)
        Ws_im = torch.sin(-2.0 * torch.pi * ns / S).to(float)
        Wd_re = torch.cos(-2.0 * torch.pi * nd / D).to(float)
        Wd_im = torch.sin(-2.0 * torch.pi * nd / D).to(float)
        return {
            "x": _w((lambda *s: torch.randn(*s, dtype=torch.bfloat16) * 0.05)(B, S, D)),
            "dft_seq_re": _w(Ws_re),
            "dft_seq_im": _w(Ws_im),
            "dft_hid_re": _w(Wd_re),
            "dft_hid_im": _w(Wd_im),
        }
    _B_in = _B_setup()

    return {
        "A_x": _A_in["x"],
        "A_wqkv": _A_in["wqkv"],
        "A_wo": _A_in["wo"],
        "B_x": _B_in["x"],
        "B_dft_seq_re": _B_in["dft_seq_re"],
        "B_dft_seq_im": _B_in["dft_seq_im"],
        "B_dft_hid_re": _B_in["dft_hid_re"],
        "B_dft_hid_im": _B_in["dft_hid_im"],
    }

def reference(A_x, A_wqkv, A_wo, B_x, B_dft_seq_re, B_dft_seq_im, B_dft_hid_re, B_dft_hid_im):
    def _A_ref(x, wqkv, wo):
        B, S, D = x.shape
        H = 32; Dh = D // H
        W, dil = 8, 2
        qkv = (lambda x, *d: x.permute(*d))((x @ wqkv).reshape(B, S, 3, H, Dh), 2, 0, 3, 1, 4)
        q, k, v = qkv[0], qkv[1], qkv[2]
        scale = Dh ** -0.5
        pos = torch.arange(S)
        off = torch.arange(W) * dil
        idx = pos[:, None] - off[None, :]
        mask = idx >= 0
        idx_c = torch.where(mask, idx, 0).reshape(-1)
        kg = k[:, :, idx_c, :].reshape(B, H, S, W, Dh)
        vg = v[:, :, idx_c, :].reshape(B, H, S, W, Dh)
        logits = torch.einsum("bhsd,bhswd->bhsw", q, kg) * scale
        logits = torch.where(mask[None, None, :, :], logits, -1e9)
        attn = _softmax(logits, axis=-1)
        o = torch.einsum("bhsw,bhswd->bhsd", attn, vg)
        return (lambda x, *d: x.permute(*d))(o, 0, 2, 1, 3).reshape(B, S, D) @ wo

    def _B_ref(x, dft_seq_re, dft_seq_im, dft_hid_re, dft_hid_im):
        a = torch.einsum("bsd,ed->bse", x, dft_hid_re)
        b = torch.einsum("bsd,ed->bse", x, dft_hid_im)
        y = torch.einsum("ts,bse->bte", dft_seq_re, a) - torch.einsum("ts,bse->bte", dft_seq_im, b)
        return y

    a = _A_ref(A_x, A_wqkv, A_wo)
    b = _B_ref(B_x, B_dft_seq_re, B_dft_seq_im, B_dft_hid_re, B_dft_hid_im)
    return torch.concatenate([a, b], axis=-1)
```

```python
import re

TRANS = ("v_exp_f32", "v_log_f32", "v_rcp_f32", "v_rsq_f32", "v_sqrt_f32", "v_sin_f32", "v_cos_f32",
         "v_rcp_iflag_f32")

_REG = re.compile(r"^(-|abs\()?([vsa])(\d+)\)?$")
_RNG = re.compile(r"^(-)?([vsa])\[(\d+):(\d+)\]$")


def regs_of(tok):
    tok = tok.strip()
    if tok in ("vcc",):
        return {("s", "vcc_lo"), ("s", "vcc_hi")}
    if tok in ("vcc_lo", "vcc_hi"):
        return {("s", tok)}
    if tok == "exec":
        return {("s", "exec_lo"), ("s", "exec_hi")}
    if tok in ("exec_lo", "exec_hi"):
        return {("s", tok)}
    if tok == "m0":
        return {("s", "m0")}
    m = _REG.match(tok)
    if m:
        return {(m.group(2), int(m.group(3)))}
    m = _RNG.match(tok)
    if m:
        return {(m.group(2), i) for i in range(int(m.group(3)), int(m.group(4)) + 1)}
    return set()


class Ins:
    __slots__ = ("text", "op", "kind", "w", "r", "ra", "rb", "rc", "passes", "label", "target", "uncond",
                 "states", "sdata", "is_dma", "dpp", "comment")

    def __init__(self, text):
        self.text = text
        self.label = None
        self.target = None
        self.uncond = False
        self.w = set()
        self.r = set()
        self.ra = set()
        self.rb = set()
        self.rc = set()
        self.sdata = set()
        self.passes = 0
        self.states = 1
        self.is_dma = False
        self.dpp = False
        self.kind = "other"
        self.op = ""
        self.parse()

    def parse(self):
        t = self.text.split(";")[0].strip()
        if not t:
            self.kind = "none"
            self.states = 0
            return
        if t.endswith(":"):
            self.kind = "label"
            self.label = t[:-1]
            self.states = 0
            return
        if t.startswith("."):
            self.kind = "none"
            self.states = 0
            return
        parts = t.split(None, 1)
        op = parts[0]
        self.op = op
        rest = parts[1] if len(parts) > 1 else ""
        ops = [o.strip() for o in rest.split(",")] if rest else []
        mods = []
        if ops:
            last = ops[-1].split()
            ops[-1] = last[0] if last else ""
            mods = last[1:]
        R = [regs_of(o) for o in ops]
        if op == "s_nop":
            self.kind = "salu"
            self.states = int(ops[0], 0) + 1
            return
        if op.startswith("s_cbranch") or op == "s_branch":
            self.kind = "branch"
            self.target = ops[0]
            self.uncond = op == "s_branch"
            return
        if op == "s_endpgm":
            self.kind = "end"
            self.uncond = True
            return
        if op.startswith("v_mfma"):
            self.kind = "mfma"
            self.w = R[0]
            self.ra, self.rb, self.rc = R[1], R[2], R[3]
            self.r = R[1] | R[2] | R[3]
            self.passes = 8 if "32x32" in op else 4
            return
        if op.startswith("ds_"):
            self.kind = "ds"
            if op.startswith("ds_read") or op.startswith("ds_bpermute") or op.startswith("ds_swizzle") \
                    or "_rtn" in op:
                self.w = R[0]
                for x in R[1:]:
                    self.r |= x
            else:
                for x in R:
                    self.r |= x
            return
        if op.startswith("buffer_") or op.startswith("global_"):
            self.kind = "vmem"
            if op in ("buffer_wbl2", "buffer_inv"):
                return
            lds = "lds" in mods or "_lds_" in op
            if lds:
                self.is_dma = True
                for x in R:
                    self.r |= x
                self.r |= {("s", "m0")}
            elif "_load" in op:
                self.w = R[0]
                for x in R[1:]:
                    self.r |= x
            elif "atomic" in op and "sc0" in mods:
                for x in R:
                    self.r |= x
                self.w = R[0]
            else:
                for x in R:
                    self.r |= x
                data = R[0] if op.startswith("buffer_") else R[1]
                if "x3" in op or "x4" in op:
                    self.sdata = data
            return
        if op.startswith("s_load") or op.startswith("s_buffer_load") or op.startswith("s_mem") \
                or op.startswith("s_atomic"):
            self.kind = "smem"
            self.w = R[0]
            for x in R[1:]:
                self.r |= x
            return
        if op.startswith("s_"):
            self.kind = "salu"
            if op.startswith("s_cmp") or op in ("s_waitcnt", "s_barrier", "s_setprio", "s_sleep", "s_bitcmp0_b32",
                                                "s_bitcmp1_b32"):
                for x in R:
                    self.r |= x
            else:
                if R:
                    self.w = R[0]
                for x in R[1:]:
                    self.r |= x
                if "saveexec" in op:
                    self.w |= regs_of("exec")
            return
        if op.startswith("v_"):
            self.kind = "valu"
            self.dpp = any(m.startswith(("row_", "quad_perm", "wave_")) for m in mods)
            if op.startswith("v_permlane") or op.startswith("v_swap"):
                self.w = R[0] | R[1]
                self.r = R[0] | R[1]
                return
            self.w = set(R[0])
            srcs = R[1:]
            if "_co_" in op or op.startswith("v_div_scale") or op.startswith("v_mad_u64"):
                self.w |= R[1]
                srcs = R[2:]
            for x in srcs:
                self.r |= x
            if op.startswith("v_cmpx"):
                self.w |= regs_of("exec")
            if op.startswith(("v_fmac", "v_mac", "v_writelane", "v_dot2c")):
                self.r |= R[0]
            return
        raise ValueError("cannot parse: " + self.text)


def vonly(s):
    return {x for x in s if x[0] in "va"}


def sonly(s):
    return {x for x in s if x[0] == "s"}


def need(p, c):
    n = 0
    pk, ck = p.kind, c.kind
    if pk == "valu":
        pv = vonly(p.w)
        ps = sonly(p.w)
        if ck == "mfma" and pv & c.r:
            n = max(n, 2)
        if ck == "valu":
            if pv & c.r:
                if c.op.startswith("v_permlane") or c.dpp:
                    n = max(n, 2)
                if c.op.startswith(("v_readlane", "v_readfirstlane")):
                    n = max(n, 1)
                if p.op.startswith(TRANS) and not c.op.startswith(TRANS):
                    n = max(n, 1)
                if "sdwa" in p.op or "op_sel" in p.text:
                    n = max(n, 1)
            if ps & c.r:
                n = max(n, 4 if c.op.startswith(("v_readlane", "v_writelane", "v_div_fmas")) else 2)
            if ps & regs_of("exec"):
                n = max(n, 5 if c.dpp else 4 if c.op.startswith(("v_readlane", "v_readfirstlane", "v_permlane",
                                                                 "v_writelane")) else 0)
        if ck == "mfma" and ps & regs_of("exec"):
            n = max(n, 4)
        if ck == "vmem" and ps & c.r:
            n = max(n, 5)
        if ck in ("salu", "smem", "branch") and ps & c.r:
            n = max(n, 1)
        if ck in ("vmem", "ds") and p.op.startswith(TRANS) and pv & c.r:
            n = max(n, 1)
    if pk == "mfma":
        P = p.passes
        if ck == "mfma":
            if p.w & c.rc:
                if not (p.w == c.rc and P == c.passes):
                    n = max(n, P + 2)
            if p.w & (c.ra | c.rb):
                n = max(n, P + 4)
            if p.w & c.w and not (p.w & c.rc):
                n = max(n, P + 4)
        elif ck == "valu":
            if p.w & (c.r | c.w):
                n = max(n, P + 4)
            if p.rc & c.w:
                n = max(n, P - 1)
        elif ck in ("vmem", "ds"):
            if p.w & (c.r | c.w):
                n = max(n, P + 4)
            if p.rc & c.w:
                n = max(n, P - 1)
    if pk == "salu" and ("s", "m0") in p.w and c.is_dma:
        n = max(n, 1)
    if pk == "vmem" and p.sdata:
        if p.sdata & c.w:
            n = max(n, 2 if ck in ("valu", "mfma") else 1)
    return n


MAXLOOK = 14


class Asm:
    def __init__(self):
        self.lines = []

    def __call__(self, text):
        for ln in text.split("\n"):
            ln = ln.strip()
            if ln:
                self.lines.append(ln)

    def label(self, name):
        self.lines.append(name + ":")

    def finish(self):
        ins = [Ins(t) for t in self.lines]

        def build():
            pb = {}
            for i, x in enumerate(ins):
                if x.kind == "branch":
                    pb.setdefault(x.target, []).append(i)
            return pb

        def missing(i, preds_by_label):
            c = ins[i]
            worst = 0
            stack = [(i - 1, 0, False)]
            seen = set()
            while stack:
                j, d, via_branch = stack.pop()
                while j >= 0 and d < MAXLOOK:
                    if (j, d) in seen:
                        break
                    seen.add((j, d))
                    p = ins[j]
                    if p.uncond and not via_branch:
                        break
                    via_branch = False
                    if p.kind == "label":
                        for b in preds_by_label.get(p.label, []):
                            stack.append((b, d, True))
                        j -= 1
                        continue
                    if p.kind == "none":
                        j -= 1
                        continue
                    n = need(p, c)
                    if n - d > worst:
                        worst = n - d
                    d += p.states
                    j -= 1
            return worst

        for _ in range(3):
            changed = False
            pb = build()
            i = 0
            while i < len(ins):
                if ins[i].kind not in ("label", "none"):
                    w = missing(i, pb)
                    if w > 0:
                        ins.insert(i, Ins("s_nop %d" % (w - 1)))
                        pb = build()
                        changed = True
                        i += 1
                i += 1
            if not changed:
                break
        res = []
        for x in ins:
            if x.kind == "label":
                res.append(x.text)
            else:
                res.append("    " + x.text)
        return "\n".join(res) + "\n"
```

```python
import sys
import os
sys.path.insert(0, os.path.dirname(os.path.abspath(__file__)))
from asmlib import Asm

NAME = "concat_heads__sliding_local_dilated__spectral_fnet__prompt"
STAMP = "--stamp" in sys.argv

SLOT = 36864
U_OFF = 2 << 20
U_ROW = 272 * 16
STAMP_OFF = 8 << 20
WS_REC = 16 << 20


def v(i, n=1):
    return "v%d" % i if n == 1 else "v[%d:%d]" % (i, i + n - 1)


def s(i, n=1):
    return "s%d" % i if n == 1 else "s[%d:%d]" % (i, i + n - 1)


def srd(a, d, base, nbytes):
    a("s_mov_b32 s%d, s%d" % (d, base))
    a("s_and_b32 s%d, s%d, 0xffff" % (d + 1, base + 1))
    a("s_mov_b32 s%d, 0x%x" % (d + 2, nbytes))
    a("s_mov_b32 s%d, 0x20000" % (d + 3))


def stamp(a, kern, slot):
    if not STAMP:
        return
    a("s_memrealtime s[%d:%d]" % (70 + 2 * slot, 71 + 2 * slot))
    a("s_waitcnt lgkmcnt(0)")


def stamp_flush(a, kern, n, tmpv=250):
    if not STAMP:
        return
    a("s_lshl_b32 s92, s2, 3")
    a("s_add_u32 s92, s92, s3")
    a("s_lshl_b32 s92, s92, 7")
    a("s_add_u32 s92, s92, 0x%x" % (STAMP_OFF + kern * 256 * 8 * 128))
    a("v_mov_b32 v%d, 0" % (tmpv + 2))
    a("s_mov_b64 exec, 1")
    for i in range(n):
        a("v_mov_b32 v%d, s%d" % (tmpv, 70 + 2 * i))
        a("v_mov_b32 v%d, s%d" % (tmpv + 1, 71 + 2 * i))
        a("buffer_store_dwordx2 v[%d:%d], v%d, s[40:43], s92 offen offset:%d" % (tmpv, tmpv + 1, tmpv + 2, 8 * i))
        a("s_waitcnt vmcnt(0)")


def prologue(a, end):
    a("s_cmp_ge_u32 s2, 256")
    a("s_cbranch_scc1 %s" % end)
    a("s_load_dwordx16 s[4:19], s[0:1], 0")
    a("s_load_dwordx4 s[20:23], s[0:1], 64")
    a("s_load_dwordx2 s[24:25], s[0:1], 80")
    a("v_lshrrev_b32 v1, 6, v0")
    a("v_and_b32 v0, 63, v0")
    a("v_readfirstlane_b32 s3, v1")
    a("s_and_b32 s26, s2, 7")
    a("s_lshr_b32 s27, s2, 3")


def loader_loop(a, tag, loads, nper):
    a("s_mov_b32 s53, 0")
    a("s_branch L%s_issue" % tag)
    a.label("L%s_wait" % tag)
    a("s_waitcnt vmcnt(%d)" % (2 * nper))
    a("s_barrier")
    a.label("L%s_issue" % tag)
    a("s_mov_b32 m0, s52")
    for i, (vr, sr, so) in enumerate(loads):
        if i:
            a("s_add_u32 m0, m0, 4096")
        a("buffer_load_dwordx4 v%d, s[%d:%d], s%d offen lds" % (vr, sr, sr + 3, so))
    a("s_add_u32 s50, s50, 128")
    a("s_add_u32 s51, s51, s54")
    a("s_add_u32 s52, s52, %d" % SLOT)
    a("s_add_u32 s53, s53, 1")
    a("s_cmp_lt_u32 s53, 4")
    a("s_cbranch_scc1 L%s_issue" % tag)
    a("s_cmp_lg_u32 s53, 4")
    a("s_cbranch_scc1 L%s_no0" % tag)
    a("s_sub_u32 s52, s52, %d" % (4 * SLOT))
    a("s_waitcnt vmcnt(%d)" % (3 * nper))
    a("s_barrier")
    a.label("L%s_no0" % tag)
    a("s_cmp_lt_u32 s53, 8")
    a("s_cbranch_scc1 L%s_wait" % tag)
    a("s_waitcnt vmcnt(%d)" % (2 * nper))
    a("s_barrier")
    a("s_waitcnt vmcnt(%d)" % nper)
    a("s_barrier")
    a("s_waitcnt vmcnt(0)")
    a("s_barrier")
    a("s_barrier")


def interleave(mfmas, reads, pre=()):
    out = list(pre)
    for i, m in enumerate(mfmas):
        out.append(m)
        if i < len(reads):
            out.append(reads[i])
    out.extend(reads[len(mfmas):])
    return out


def lane_xaddr(a, dst0, dst1, t0, t1):
    a("v_and_b32 v%d, 15, v0" % t0)
    a("v_lshrrev_b32 v%d, 4, v0" % t1)
    a("v_lshrrev_b32 v%d, 1, v%d" % (dst1, t0))
    a("v_xor_b32 v%d, v%d, v%d" % (dst1, dst1, t1))
    a("v_lshlrev_b32 v%d, 4, v%d" % (dst1, dst1))
    a("v_lshl_add_u32 v%d, v%d, 7, v%d" % (dst0, t0, dst1))
    a("v_xor_b32 v%d, 64, v%d" % (dst1, dst0))


def lane_traddr(a, dst, t0, t1, t2):
    a("v_and_b32 v%d, 15, v0" % t0)
    a("v_lshrrev_b32 v%d, 4, v0" % t1)
    a("v_lshrrev_b32 v%d, 2, v%d" % (t2, t0))
    a("v_lshl_add_u32 v%d, v%d, 3, v%d" % (dst, t1, t2))
    a("v_lshlrev_b32 v%d, 7, v%d" % (dst, dst))
    a("v_and_b32 v%d, 3, v%d" % (t2, t0))
    a("v_lshl_add_u32 v%d, v%d, 3, v%d" % (dst, t2, dst))
    a("v_lshrrev_b32 v%d, 3, v%d" % (t2, t0))
    a("v_and_b32 v%d, 1, v%d" % (t1, t1))
    a("v_lshl_add_u32 v%d, v%d, 1, v%d" % (t2, t1, t2))
    a("v_lshl_add_u32 v%d, v%d, 5, v%d" % (dst, t2, dst))


def slot_advance(a, regs):
    a("s_add_u32 s60, s60, 1")
    a("s_and_b32 s61, s60, 3")
    a("s_cmp_eq_u32 s61, 0")
    a("s_cselect_b32 s61, s63, s62")
    for r in regs:
        a("v_add_u32 v%d, s61, v%d" % (r, r))


def kernel1():
    a = Asm()
    prologue(a, "L1_end")
    a("s_cmp_ge_u32 s26, 6")
    a("s_cbranch_scc1 L1_B")
    a("s_cmp_ge_u32 s26, 3")
    a("s_cselect_b32 s44, 1, 0")
    a("s_mul_i32 s45, s44, 3")
    a("s_sub_u32 s45, s26, s45")
    a("s_lshl_b32 s45, s45, 3")
    a("s_and_b32 s46, s27, 7")
    a("s_add_u32 s45, s45, s46")
    a("s_lshl_b32 s44, s44, 2")
    a("s_lshr_b32 s46, s27, 3")
    a("s_add_u32 s44, s44, s46")
    a("s_and_b32 s46, s45, 1")
    a("s_lshr_b32 s45, s45, 1")
    a("s_mul_i32 s47, s45, 5400")
    a("s_lshr_b32 s47, s47, 6")
    a("s_cmp_ge_u32 s3, 4")
    a("s_cbranch_scc1 L1_Acons")
    a("v_lshrrev_b32 v1, 3, v0")
    a("v_and_b32 v2, 7, v0")
    a("v_lshrrev_b32 v3, 1, v1")
    a("s_and_b32 s48, s3, 1")
    a("s_lshl_b32 s49, s48, 2")
    a("v_or_b32 v4, s49, v3")
    a("v_xor_b32 v4, v4, v2")
    a("v_lshlrev_b32 v4, 4, v4")
    a("v_lshl_add_u32 v4, v1, 11, v4")
    a("s_lshl_b32 s49, s3, 3")
    a("s_add_u32 s49, s49, s47")
    a("s_lshl_b32 s49, s49, 1")
    a("s_add_u32 s49, s49, s46")
    a("s_lshl_b32 s49, s49, 10")
    a("v_add_u32 v10, s49, v4")
    a("v_add_u32 v11, 0x10000, v10")
    a("v_add_u32 v12, 0x20000, v10")
    a("v_and_b32 v5, 1, v3")
    a("s_lshl_b32 s49, s48, 1")
    a("v_or_b32 v5, s49, v5")
    a("v_lshlrev_b32 v5, 1, v5")
    a("v_xor_b32 v5, v5, v2")
    a("v_lshlrev_b32 v5, 4, v5")
    a("s_lshl_b32 s49, s3, 3")
    a("v_add_u32 v6, s49, v1")
    a("v_mul_u32_u24 v6, 3072, v6")
    a("s_lshl_b32 s49, s44, 7")
    a("v_add3_u32 v13, v6, v5, s49")
    for i in range(1, 6):
        a("v_add_u32 v%d, 0x%x, v13" % (13 + i, (i & 1) * 32 * 3072 + (i >> 1) * 1024))
    a("s_mov_b32 s50, 0")
    a("s_mov_b32 s51, 0")
    a("s_lshl_b32 s52, s3, 10")
    a("s_mov_b32 s54, %d" % (64 * 3072))
    a("s_waitcnt lgkmcnt(0)")
    srd(a, 28, 4, 2048 * 1024)
    srd(a, 32, 6, 512 * 3072)
    srd(a, 40, 24, WS_REC)
    stamp(a, 0, 0)
    loader_loop(a, "1LA", [(10 + i, 28, 50) for i in range(3)] + [(13 + i, 32, 51) for i in range(6)], 9)
    stamp(a, 0, 1)
    stamp_flush(a, 0, 2)
    a("s_endpgm")

    a.label("L1_Acons")
    a("s_setprio 1")
    a("s_sub_u32 s48, s3, 4")
    Q, K, V = 32, 56, 80
    X = [104, 140]
    W = [128, 164]
    lane_xaddr(a, 4, 5, 1, 2)
    lane_traddr(a, 6, 1, 2, 3)
    a("s_lshl_b32 s49, s48, 5")
    a("v_xor_b32 v6, s49, v6")
    for r in range(32, 104):
        a("v_mov_b32 v%d, 0" % r)
    a("v_and_b32 v1, 15, v0")
    a("v_lshrrev_b32 v2, 4, v0")
    a("v_lshlrev_b32 v3, 2, v2")
    a("v_sub_u32 v3, v1, v3")
    a("v_mov_b32 v7, 0xf149f2ca")
    a("v_mov_b32 v16, 0")
    a("v_mov_b32 v17, 0")
    a("s_mov_b32 s56, 0xffff")
    a("s_mov_b32 s57, 0xffff0000")
    for r in range(4):
        a("v_subrev_u32 v24, %d, v3" % r)
        a("v_cmp_gt_u32 vcc, 8, v24")
        a("v_cndmask_b32 v%d, v7, v32, vcc" % (8 + r))
        a("v_mov_b32 v25, s%d" % (56 + (r & 1)))
        a("v_cndmask_b32 v25, v32, v25, vcc")
        a("v_or_b32 v%d, v%d, v25" % (16 + (r >> 1), 16 + (r >> 1)))
        a("v_add_u32 v24, 16, v24")
        a("v_cmp_gt_u32 vcc, 8, v24")
        a("v_cndmask_b32 v%d, v7, v32, vcc" % (12 + r))
    a("v_not_b32 v18, v16")
    a("v_not_b32 v19, v17")
    for r in range(4):
        a("v_mov_b32 v%d, 0x3f803f80" % (20 + r))
    a("s_lshl_b32 s49, s44, 2")
    a("s_add_u32 s49, s49, s48")
    a("s_lshl_b32 s49, s49, 1")
    a("s_add_u32 s49, s49, s46")
    a("s_lshl_b32 s49, s49, 10")
    a("s_add_u32 s49, s49, s47")
    a("v_add_u32 v26, s49, v1")
    a("v_lshlrev_b32 v26, 5, v26")
    a("v_lshl_add_u32 v26, v2, 3, v26")
    a("s_sub_u32 s49, s45, 1")
    a("s_mul_i32 s49, s49, 5400")
    a("s_lshr_b32 s49, s49, 6")
    a("s_add_u32 s49, s49, 96")
    a("s_sub_u32 s49, s49, s47")
    a("s_cmp_eq_u32 s45, 0")
    a("s_cselect_b32 s49, 0, s49")
    a("v_mov_b32 v24, 0x80000000")
    a("v_cmp_gt_u32 vcc, s49, v1")
    a("v_cndmask_b32 v27, v26, v24, vcc")
    a("s_mov_b32 s60, 0")
    a("s_mov_b32 s62, %d" % SLOT)
    a("s_mov_b32 s63, %d" % (-3 * SLOT))
    a("s_waitcnt lgkmcnt(0)")
    srd(a, 40, 24, WS_REC)
    stamp(a, 0, 0)

    def readsA(st, kk):
        r = []
        for t in range(3):
            for hh in range(2):
                r.append("ds_read_b64_tr_b16 %s, v6 offset:%d" % (v(W[st] + 4 * t + 2 * hh, 2),
                                                                 12288 + t * 8192 + kk * 4096 + hh * 512))
        for rt in range(6):
            r.append("ds_read_b128 %s, v%d offset:%d" % (v(X[st] + 4 * rt, 4), 4 + kk, rt * 2048))
        return r

    def mfmaA(st):
        m = []
        for rt in range(6):
            x = v(X[st] + 4 * rt, 4)
            m.append("v_mfma_f32_16x16x32_bf16 %s, %s, %s, %s" % (v(Q + 4 * rt, 4), v(W[st], 4), x, v(Q + 4 * rt, 4)))
            m.append("v_mfma_f32_16x16x32_bf16 %s, %s, %s, %s" % (v(K + 4 * rt, 4), v(W[st] + 4, 4), x, v(K + 4 * rt, 4)))
            m.append("v_mfma_f32_16x16x32_bf16 %s, %s, %s, %s" % (v(V + 4 * rt, 4), x, v(W[st] + 8, 4), v(V + 4 * rt, 4)))
        return m

    a("s_barrier")
    stamp(a, 0, 1)
    for r in readsA(0, 0):
        a(r)
    a("s_waitcnt lgkmcnt(0)")
    a.label("L1_Aloop")
    for x in interleave(mfmaA(0), readsA(1, 1)):
        a(x)
    a("s_waitcnt lgkmcnt(0)")
    a("s_barrier")
    slot_advance(a, [4, 5, 6])
    for x in interleave(mfmaA(1), readsA(0, 0)):
        a(x)
    a("s_waitcnt lgkmcnt(0)")
    a("s_cmp_lt_u32 s60, 8")
    a("s_cbranch_scc1 L1_Aloop")
    stamp(a, 0, 2)
    Qp, Kp, Vp = 104, 116, 128
    for b in range(6):
        for (src, dst) in ((Q, Qp), (K, Kp), (V, Vp)):
            a("v_cvt_pk_bf16_f32 v%d, v%d, v%d" % (dst + 2 * b, src + 4 * b, src + 4 * b + 1))
            a("v_cvt_pk_bf16_f32 v%d, v%d, v%d" % (dst + 2 * b + 1, src + 4 * b + 2, src + 4 * b + 3))
    Sc, Sp = 32, 56
    for b in range(6):
        a("v_mfma_f32_16x16x16_bf16 %s, %s, %s, v[8:11]" % (v(Sc + 4 * b, 4), v(Kp + 2 * b, 2), v(Qp + 2 * b, 2)))
        if b:
            a("v_mfma_f32_16x16x16_bf16 %s, %s, %s, v[12:15]" % (v(Sp + 4 * b, 4), v(Kp + 2 * b - 2, 2), v(Qp + 2 * b, 2)))
    a("s_mov_b32 s56, 0x3eb8aa3b")
    a("s_mov_b32 s57, 0xffff0000")
    T = 140
    for b in range(1, 6):
        for r in range(4):
            a("v_max_f32 v%d, v%d, v%d" % (Sc + 4 * b + r, Sc + 4 * b + r, Sp + 4 * b + r))
    for b in range(6):
        a("v_cvt_pk_bf16_f32 v%d, v%d, v%d" % (T + 4 * b, Sc + 4 * b, Sc + 4 * b + 1))
        a("v_cvt_pk_bf16_f32 v%d, v%d, v%d" % (T + 4 * b + 1, Sc + 4 * b + 2, Sc + 4 * b + 3))
    for b in range(6):
        a("v_lshlrev_b32 v%d, 16, v%d" % (Sc + 4 * b, T + 4 * b))
        a("v_and_b32 v%d, s57, v%d" % (Sc + 4 * b + 1, T + 4 * b))
        a("v_lshlrev_b32 v%d, 16, v%d" % (Sc + 4 * b + 2, T + 4 * b + 1))
        a("v_and_b32 v%d, s57, v%d" % (Sc + 4 * b + 3, T + 4 * b + 1))
    for b in range(6):
        a("v_max3_f32 v%d, v%d, v%d, v%d" % (T + 4 * b, Sc + 4 * b, Sc + 4 * b + 1, Sc + 4 * b + 2))
    for b in range(6):
        a("v_max_f32 v%d, v%d, v%d" % (T + 4 * b, T + 4 * b, Sc + 4 * b + 3))
    for sw in ("v_permlane32_swap_b32", "v_permlane16_swap_b32"):
        for b in range(6):
            a("v_mov_b32 v%d, v%d" % (T + 4 * b + 1, T + 4 * b))
        for b in range(6):
            a("%s v%d, v%d" % (sw, T + 4 * b, T + 4 * b + 1))
        for b in range(6):
            a("v_max_f32 v%d, v%d, v%d" % (T + 4 * b, T + 4 * b, T + 4 * b + 1))
    for b in range(6):
        a("v_mul_f32 v%d, s56, v%d" % (T + 4 * b, T + 4 * b))
    for b in range(6):
        for r in range(4):
            a("v_fma_f32 v%d, v%d, s56, -v%d" % (Sc + 4 * b + r, Sc + 4 * b + r, T + 4 * b))
    for b in range(6):
        for r in range(4):
            a("v_exp_f32 v%d, v%d" % (Sc + 4 * b + r, Sc + 4 * b + r))
    for b in range(6):
        a("v_cvt_pk_bf16_f32 v%d, v%d, v%d" % (T + 4 * b + 2, Sc + 4 * b, Sc + 4 * b + 1))
        a("v_cvt_pk_bf16_f32 v%d, v%d, v%d" % (T + 4 * b + 3, Sc + 4 * b + 2, Sc + 4 * b + 3))
    for b in range(1, 6):
        a("v_and_b32 v%d, v18, v%d" % (T + 4 * b, T + 4 * b + 2))
        a("v_and_b32 v%d, v19, v%d" % (T + 4 * b + 1, T + 4 * b + 3))
        a("v_and_b32 v%d, v16, v%d" % (T + 4 * b + 2, T + 4 * b + 2))
        a("v_and_b32 v%d, v17, v%d" % (T + 4 * b + 3, T + 4 * b + 3))
    Oa, Sm = 32, 56
    a("v_mfma_f32_16x16x16_bf16 %s, %s, %s, 0" % (v(Oa, 4), v(Vp, 2), v(T + 2, 2)))
    a("v_mfma_f32_16x16x16_bf16 %s, v[20:21], %s, 0" % (v(Sm, 4), v(T + 2, 2)))
    for b in range(1, 6):
        a("v_mfma_f32_16x16x32_bf16 %s, %s, %s, 0" % (v(Oa + 4 * b, 4), v(Vp + 2 * b - 2, 4), v(T + 4 * b, 4)))
        a("v_mfma_f32_16x16x32_bf16 %s, v[20:23], %s, 0" % (v(Sm + 4 * b, 4), v(T + 4 * b, 4)))
    for b in range(6):
        a("v_rcp_f32 v%d, v%d" % (Sm + 4 * b, Sm + 4 * b))
    for b in range(6):
        for r in range(4):
            a("v_mul_f32 v%d, v%d, v%d" % (Oa + 4 * b + r, Oa + 4 * b + r, Sm + 4 * b))
        a("v_cvt_pk_bf16_f32 v%d, v%d, v%d" % (80 + 2 * b, Oa + 4 * b, Oa + 4 * b + 1))
        a("v_cvt_pk_bf16_f32 v%d, v%d, v%d" % (80 + 2 * b + 1, Oa + 4 * b + 2, Oa + 4 * b + 3))
        a("buffer_store_dwordx2 %s, v%d, s[40:43], 0 offen offset:%d" % (v(80 + 2 * b, 2), 27 if b == 0 else 26, 512 * b))
    stamp(a, 0, 3)
    if STAMP:
        a("s_waitcnt vmcnt(0)")
        stamp(a, 0, 4)
        stamp_flush(a, 0, 5)
    a("s_endpgm")

    a.label("L1_B")
    a("s_sub_u32 s45, s26, 6")
    a("s_lshl_b32 s45, s45, 3")
    a("s_and_b32 s46, s27, 7")
    a("s_add_u32 s45, s45, s46")
    a("s_lshr_b32 s44, s27, 3")
    a("s_cmp_ge_u32 s3, 4")
    a("s_cbranch_scc1 L1_Bcons")
    a("v_lshrrev_b32 v1, 3, v0")
    a("v_and_b32 v2, 7, v0")
    a("v_lshrrev_b32 v3, 1, v1")
    a("s_and_b32 s48, s3, 1")
    a("s_lshl_b32 s49, s48, 2")
    a("v_or_b32 v4, s49, v3")
    a("v_xor_b32 v4, v4, v2")
    a("v_lshlrev_b32 v4, 4, v4")
    a("s_lshl_b32 s49, s3, 3")
    a("v_add_u32 v5, s49, v1")
    a("v_lshl_add_u32 v10, v5, 16, v4")
    a("s_lshl_b32 s49, s45, 12")
    a("v_add_u32 v10, s49, v10")
    for i in range(1, 4):
        a("v_add_u32 v%d, %d, v10" % (10 + i, 1024 * i))
    a("v_lshl_add_u32 v14, v5, 10, v4")
    a("s_lshl_b32 s49, s44, 16")
    a("v_add_u32 v14, s49, v14")
    a("v_add_u32 v15, 0x8000, v14")
    a("s_mov_b32 s50, 0")
    a("s_mov_b32 s51, 0")
    a("s_lshl_b32 s52, s3, 10")
    a("s_mov_b32 s54, 128")
    a("s_waitcnt lgkmcnt(0)")
    srd(a, 28, 10, 2048 * 1024)
    srd(a, 32, 16, 512 * 1024)
    srd(a, 36, 18, 512 * 1024)
    srd(a, 40, 24, WS_REC)
    stamp(a, 0, 0)
    loader_loop(a, "1LB", [(10 + i, 28, 50) for i in range(4)] +
                [(14, 32, 51), (15, 32, 51), (14, 36, 51), (15, 36, 51)], 8)
    stamp(a, 0, 1)
    stamp_flush(a, 0, 2)
    a("s_endpgm")

    a.label("L1_Bcons")
    a("s_setprio 1")
    a("s_sub_u32 s48, s3, 4")
    Aa, Ba = 32, 64
    X = [96, 136]
    W = [128, 168]
    CR, NCI, NCR = 176, 184, 192
    lane_xaddr(a, 4, 5, 1, 2)
    a("s_lshl_b32 s49, s48, 11")
    a("s_add_u32 s49, s49, 16384")
    a("v_add_u32 v6, s49, v4")
    a("v_add_u32 v7, s49, v5")
    a("v_lshlrev_b32 v3, 14, v1")
    a("v_lshl_add_u32 v3, v2, 3, v3")
    a("v_add_u32 v8, 0x40000, v3")
    a("s_waitcnt lgkmcnt(0)")
    srd(a, 32, 16, 512 * 1024)
    srd(a, 36, 18, 512 * 1024)
    srd(a, 40, 24, WS_REC)
    for tau, ar in ((0, 3), (1, 8)):
        for hh in range(2):
            a("buffer_load_dwordx2 %s, v%d, s[32:35], 0 offen offset:%d" % (v(CR + 4 * tau + 2 * hh, 2), ar, 32 * hh))
            a("buffer_load_dwordx2 %s, v%d, s[36:39], 0 offen offset:%d" % (v(NCI + 4 * tau + 2 * hh, 2), ar, 32 * hh))
    for r in range(32, 96):
        a("v_mov_b32 v%d, 0" % r)
    a("v_mov_b32 v9, 0xbf803f80")
    a("s_add_u32 s49, s44, s48")
    a("s_cmp_eq_u32 s49, 0")
    a("s_cselect_b32 s56, 0x00010001, 0")
    a("s_mov_b32 s57, s56")
    a("v_mul_u32_u24 v10, %d, v2" % (64 * U_ROW))
    a("s_mul_i32 s49, s45, %d" % U_ROW)
    a("s_add_u32 s49, s49, 0x%x" % U_OFF)
    a("v_add_u32 v10, s49, v10")
    a("v_add_u32 v11, %d, v10" % (256 * 16))
    a("v_mov_b32 v12, 0x80000000")
    a("v_cndmask_b32 v11, v12, v11, s[56:57]")
    a("s_lshl_b32 s49, s44, 2")
    a("s_add_u32 s49, s49, s48")
    a("s_lshl_b32 s49, s49, 4")
    a("v_add_u32 v12, s49, v1")
    a("v_lshl_add_u32 v10, v12, 4, v10")
    a("s_mov_b32 s60, 0")
    a("s_mov_b32 s62, %d" % SLOT)
    a("s_mov_b32 s63, %d" % (-3 * SLOT))
    stamp(a, 0, 0)

    def readsB(st, kk):
        r = []
        for t in range(2):
            r.append("ds_read_b128 %s, v%d offset:%d" % (v(W[st] + 4 * t, 4), 6 + kk, t * 8192))
        for rt in range(8):
            r.append("ds_read_b128 %s, v%d offset:%d" % (v(X[st] + 4 * rt, 4), 4 + kk, rt * 2048))
        return r

    def mfmaB(st):
        m = []
        for t, acc in ((0, Aa), (1, Ba)):
            for rt in range(8):
                m.append("v_mfma_f32_16x16x32_bf16 %s, %s, %s, %s" % (v(acc + 4 * rt, 4), v(X[st] + 4 * rt, 4),
                                                                     v(W[st] + 4 * t, 4), v(acc + 4 * rt, 4)))
        return m

    def fixB(st):
        return ["v_cndmask_b32 v%d, v%d, v9, s[56:57]" % (W[st] + 4 + r, W[st] + 4 + r) for r in range(4)]

    a("s_barrier")
    stamp(a, 0, 1)
    for r in readsB(0, 0):
        a(r)
    a("s_waitcnt lgkmcnt(0)")
    a.label("L1_Bloop")
    for x in interleave(mfmaB(0), fixB(0) + readsB(1, 1)):
        a(x)
    a("s_waitcnt lgkmcnt(0)")
    a("s_barrier")
    slot_advance(a, [4, 5, 6, 7])
    for x in interleave(mfmaB(1), fixB(1) + readsB(0, 0)):
        a(x)
    a("s_waitcnt lgkmcnt(0)")
    a("s_cmp_lt_u32 s60, 8")
    a("s_cbranch_scc1 L1_Bloop")
    stamp(a, 0, 2)
    PA, PB = 96, 112
    a("s_waitcnt vmcnt(0)")
    a("s_mov_b32 s58, 0x80008000")
    for r in range(8):
        a("v_xor_b32 v%d, s58, v%d" % (NCI + r, NCI + r))
        a("v_xor_b32 v%d, s58, v%d" % (NCR + r, CR + r))
    for rt in range(8):
        for (src, dst) in ((Aa, PA), (Ba, PB)):
            a("v_cvt_pk_bf16_f32 v%d, v%d, v%d" % (dst + 2 * rt, src + 4 * rt, src + 4 * rt + 1))
            a("v_cvt_pk_bf16_f32 v%d, v%d, v%d" % (dst + 2 * rt + 1, src + 4 * rt + 2, src + 4 * rt + 3))
    Ur, Un = 32, 64

    def ustore(voff):
        for tau in range(2):
            for r in range(4):
                d = 136 + 4 * (4 * tau + r)
                for half, src in ((0, Ur), (1, Un)):
                    for p in range(2):
                        a("v_cvt_pk_bf16_f32 v%d, v%d, v%d" % (d + 2 * half + p, src + 16 * tau + 8 * p + r,
                                                              src + 16 * tau + 8 * p + 4 + r))
                a("s_mov_b32 s59, %d" % ((16 * tau + r) * 16 * U_ROW))
                a("buffer_store_dwordx4 %s, v%d, s[40:43], s59 offen" % (v(d, 4), voff))

    a("s_cmp_eq_u32 s56, 0")
    a("s_cbranch_scc1 L1_Bnorm")
    for tau in range(2):
        for sl in range(4):
            a("v_mfma_f32_16x16x32_bf16 %s, %s, %s, 0" % (v(Ur + 16 * tau + 4 * sl, 4), v(CR + 4 * tau, 4), v(PB + 4 * sl, 4)))
            a("v_mfma_f32_16x16x32_bf16 %s, %s, %s, 0" % (v(Un + 16 * tau + 4 * sl, 4), v(NCI + 4 * tau, 4), v(PB + 4 * sl, 4)))
    ustore(11)
    a("v_mov_b32 v9, 0")
    for r in range(16):
        a("v_cndmask_b32 v%d, v%d, v9, s[56:57]" % (PB + r, PB + r))
    a.label("L1_Bnorm")
    for tau in range(2):
        for sl in range(4):
            a("v_mfma_f32_16x16x32_bf16 %s, %s, %s, 0" % (v(Ur + 16 * tau + 4 * sl, 4), v(CR + 4 * tau, 4), v(PA + 4 * sl, 4)))
            a("v_mfma_f32_16x16x32_bf16 %s, %s, %s, 0" % (v(Un + 16 * tau + 4 * sl, 4), v(NCI + 4 * tau, 4), v(PA + 4 * sl, 4)))
    for tau in range(2):
        for sl in range(4):
            d = v(Ur + 16 * tau + 4 * sl, 4)
            a("v_mfma_f32_16x16x32_bf16 %s, %s, %s, %s" % (d, v(NCI + 4 * tau, 4), v(PB + 4 * sl, 4), d))
            d = v(Un + 16 * tau + 4 * sl, 4)
            a("v_mfma_f32_16x16x32_bf16 %s, %s, %s, %s" % (d, v(NCR + 4 * tau, 4), v(PB + 4 * sl, 4), d))
    ustore(10)
    stamp(a, 0, 3)
    if STAMP:
        a("s_waitcnt vmcnt(0)")
        stamp(a, 0, 4)
        stamp_flush(a, 0, 5)
    a.label("L1_end")
    a("s_endpgm")
    return a.finish()


def out_epilogue(a, acc, tmp, voff):
    for T in range(4):
        a("v_cvt_pk_bf16_f32 v%d, v%d, v%d" % (tmp + 2 * T, acc + 4 * T, acc + 4 * T + 1))
        a("v_cvt_pk_bf16_f32 v%d, v%d, v%d" % (tmp + 2 * T + 1, acc + 4 * T + 2, acc + 4 * T + 3))
    for p in range(2):
        a("v_permlane16_swap_b32 v%d, v%d" % (tmp + 4 * p, tmp + 4 * p + 2))
        a("v_permlane16_swap_b32 v%d, v%d" % (tmp + 4 * p + 1, tmp + 4 * p + 3))
    for p in range(2):
        a("buffer_store_dwordx4 %s, v%d, s[44:47], 0 offen offset:%d" % (v(tmp + 4 * p, 4), voff, 64 * p))


def kernel2():
    a = Asm()
    prologue(a, "L2_end")
    a("s_lshl_b32 s48, s26, 2")
    a("s_and_b32 s49, s27, 3")
    a("s_add_u32 s48, s48, s49")
    a("s_lshr_b32 s49, s27, 2")
    a("v_and_b32 v1, 15, v0")
    a("v_lshrrev_b32 v2, 4, v0")
    a("v_and_b32 v3, 1, v2")
    a("v_lshlrev_b32 v3, 5, v3")
    a("v_lshrrev_b32 v4, 1, v2")
    a("v_lshl_add_u32 v3, v4, 4, v3")
    a("s_lshl_b32 s50, s49, 7")
    a("v_add_u32 v3, s50, v3")
    a("s_cmp_ge_u32 s3, 4")
    a("s_cbranch_scc1 L2_G")
    a("v_lshrrev_b32 v5, 3, v0")
    a("v_and_b32 v6, 7, v0")
    a("v_lshrrev_b32 v7, 1, v5")
    a("s_and_b32 s51, s3, 1")
    a("v_and_b32 v8, 1, v7")
    a("s_lshl_b32 s52, s51, 1")
    a("v_or_b32 v8, s52, v8")
    a("v_lshlrev_b32 v8, 1, v8")
    a("v_xor_b32 v8, v8, v6")
    a("v_lshlrev_b32 v8, 4, v8")
    a("s_lshl_b32 s52, s3, 3")
    a("v_add_u32 v9, s52, v5")
    a("v_lshl_add_u32 v10, v9, 10, v8")
    a("v_add_u32 v10, s50, v10")
    a("s_lshl_b32 s52, s51, 2")
    a("v_or_b32 v8, s52, v7")
    a("v_xor_b32 v8, v8, v6")
    a("v_lshlrev_b32 v8, 4, v8")
    a("v_lshl_add_u32 v11, v9, 17, v8")
    a("s_lshl_b32 s52, s48, 12")
    a("v_add_u32 v11, s52, v11")
    a("s_lshl_b32 s52, s49, 2")
    a("s_add_u32 s52, s52, s3")
    a("s_lshl_b32 s52, s52, 4")
    a("v_add_u32 v12, s52, v1")
    a("v_sub_u32 v13, 512, v12")
    a("v_min_u32 v12, v12, v13")
    a("v_mul_u32_u24 v13, %d, v2" % U_ROW)
    a("v_lshl_add_u32 v12, v12, 4, v13")
    a("s_mul_i32 s52, s48, %d" % (16 * U_ROW))
    a("s_add_u32 s52, s52, 0x%x" % U_OFF)
    a("v_add_u32 v12, s52, v12")
    a("s_waitcnt lgkmcnt(0)")
    srd(a, 28, 8, 512 * 1024)
    srd(a, 32, 12, 2048 * 4096)
    srd(a, 36, 14, 2048 * 4096)
    srd(a, 40, 24, WS_REC)
    srd(a, 44, 20, 2048 * 2048)
    stamp(a, 1, 0)
    a("s_lshl_b32 s53, s3, 10")
    a("s_mov_b32 m0, s53")
    a("s_mov_b32 s54, 0")
    for i in range(16):
        if i:
            a("s_add_u32 m0, m0, 4096")
            a("s_add_u32 s54, s54, 0x8000")
        a("buffer_load_dwordx4 v10, s[28:31], s54 offen lds")
    a("s_mov_b32 s54, 0x%x" % (32 * 32 * 4096))
    for i in range(4):
        a("s_add_u32 m0, m0, 4096")
        a("buffer_load_dwordx4 v11, s[%d:%d], %s offen lds" % (32 + 4 * (i >> 1), 35 + 4 * (i >> 1), "s54" if i & 1 else "0"))
    for i in range(4):
        a("s_add_u32 m0, m0, 4096")
        a("s_mov_b32 s54, %d" % (4 * U_ROW * i))
        a("buffer_load_dwordx4 v12, s[40:43], s54 offen lds")
    a("s_lshl_b32 s52, s3, 4")
    a("v_add_u32 v13, s52, v1")
    a("v_lshl_add_u32 v13, v13, 5, s48")
    a("v_sub_u32 v14, 2048, v13")
    a("v_and_b32 v14, 2047, v14")
    a("s_cmp_ge_u32 s49, 4")
    a("s_cselect_b64 s[56:57], -1, 0")
    a("v_cndmask_b32 v13, v13, v14, s[56:57]")
    a("v_lshl_add_u32 v13, v13, 11, v3")
    a("v_add_u32 v13, 1024, v13")
    a("v_lshrrev_b32 v14, 1, v1")
    a("v_xor_b32 v14, v14, v4")
    a("v_lshlrev_b32 v14, 4, v14")
    a("v_lshl_add_u32 v14, v1, 7, v14")
    a("v_and_b32 v15, 1, v2")
    a("v_lshl_add_u32 v14, v15, 3, v14")
    a("s_lshl_b32 s52, s3, 11")
    a("s_add_u32 s52, s52, 65536")
    a("v_add_u32 v14, s52, v14")
    for c in range(1, 4):
        a("v_xor_b32 v%d, %d, v14" % (14 + c, 32 * c))
    a("v_lshlrev_b32 v18, 4, v0")
    a("v_add_u32 v18, 81920, v18")
    for n in (20, 16, 12):
        a("s_waitcnt vmcnt(%d)" % n)
        a("s_barrier")
    a("s_waitcnt vmcnt(0)")
    a("s_barrier")
    stamp(a, 1, 1)
    WSF, UF, ACC = 32, 48, 112
    for c in range(4):
        a("ds_read_b64 %s, v%d" % (v(WSF + 4 * c, 2), 14 + c))
        a("ds_read_b64 %s, v%d offset:8192" % (v(WSF + 4 * c + 2, 2), 14 + c))
        for T in range(4):
            a("ds_read_b128 %s, v18 offset:%d" % (v(UF + 16 * c + 4 * T, 4), T * 1024 + c * 4096))
        if c == 1:
            a("s_waitcnt lgkmcnt(6)")
    for c in range(4):
        if c:
            a("s_waitcnt lgkmcnt(%d)" % (6 * (3 - c)))
        for T in range(4):
            a("v_mfma_f32_16x16x32_bf16 %s, %s, %s, %s" % (v(ACC + 4 * T, 4), v(UF + 16 * c + 4 * T, 4), v(WSF + 4 * c, 4),
                                                          v(ACC + 4 * T, 4) if c else "0"))
    out_epilogue(a, ACC, 128, 13)
    stamp(a, 1, 2)
    if STAMP:
        a("s_waitcnt vmcnt(0)")
        stamp(a, 1, 3)
        stamp_flush(a, 1, 4)
    a("s_endpgm")

    a.label("L2_G")
    a("s_sub_u32 s51, s3, 4")
    a("s_lshl_b32 s52, s48, 2")
    a("s_add_u32 s52, s52, s51")
    a("s_lshl_b32 s52, s52, 4")
    a("v_add_u32 v5, s52, v1")
    a("v_lshlrev_b32 v6, 16, v4")
    a("v_lshl_add_u32 v6, v5, 5, v6")
    a("v_and_b32 v7, 1, v2")
    a("v_lshl_add_u32 v6, v7, 4, v6")
    a("s_waitcnt lgkmcnt(0)")
    srd(a, 40, 24, WS_REC)
    srd(a, 44, 20, 2048 * 2048)
    stamp(a, 1, 0)
    OF, WF, ACC = 32, 96, 128
    a("s_mov_b32 s54, 0")
    for c in range(16):
        if c:
            a("s_add_u32 s54, s54, 0x20000")
        a("buffer_load_dwordx4 %s, v6, s[40:43], s54 offen" % v(OF + 4 * c, 4))
    a("v_and_b32 v7, 1023, v5")
    a("v_lshrrev_b32 v8, 10, v5")
    a("v_lshl_add_u32 v7, v7, 1, v8")
    a("v_lshl_add_u32 v13, v7, 11, v3")
    lane_traddr(a, 14, 8, 9, 10)
    for T in range(1, 4):
        a("v_xor_b32 v%d, %d, v14" % (14 + T, 32 * T))

    def rd(ks):
        r = []
        for T in range(4):
            for hh in range(2):
                r.append("ds_read_b64_tr_b16 %s, v%d offset:%d" % (v(WF + 16 * (ks & 1) + 4 * T + 2 * hh, 2), 14 + T,
                                                                  ks * 4096 + hh * 512))
        return r

    def mm(ks):
        return ["v_mfma_f32_16x16x32_bf16 %s, %s, %s, %s" % (v(ACC + 4 * T, 4), v(WF + 16 * (ks & 1) + 4 * T, 4),
                                                            v(OF + 4 * ks, 4), v(ACC + 4 * T, 4) if ks else "0")
                for T in range(4)]

    a("s_barrier")
    stamp(a, 1, 1)
    for x in rd(0):
        a(x)
    for ks in range(16):
        nxt = []
        if ks < 15:
            if (ks + 1) % 4 == 0:
                a("s_barrier")
            nxt = rd(ks + 1)
        for x in nxt:
            a(x)
        a("s_waitcnt vmcnt(%d) lgkmcnt(%d)" % (15 - ks, len(nxt)))
        for x in mm(ks):
            a(x)
    out_epilogue(a, ACC, 144, 13)
    stamp(a, 1, 2)
    if STAMP:
        a("s_waitcnt vmcnt(0)")
        stamp(a, 1, 3)
        stamp_flush(a, 1, 4)
    a.label("L2_end")
    a("s_endpgm")
    return a.finish()


def kd(name, vgpr, sgpr=102):
    acc = (vgpr + 3) // 4 * 4
    return """.amdhsa_kernel %s
  .amdhsa_next_free_vgpr %d
  .amdhsa_next_free_sgpr %d
  .amdhsa_accum_offset %d
  .amdhsa_group_segment_fixed_size 0
  .amdhsa_kernarg_size 88
  .amdhsa_user_sgpr_count 2
  .amdhsa_user_sgpr_kernarg_segment_ptr 1
  .amdhsa_system_sgpr_workgroup_id_x 1
.end_amdhsa_kernel
""" % (name, vgpr, sgpr, acc)


def main():
    k1, k2 = "p1_kernel", "p2_kernel"
    head = open(os.path.join(os.path.dirname(os.path.abspath(__file__)), "header.txt")).read()
    out = head
    out += "; @launch kernel=%s grid=(256,1,1) block=(512,1,1) lds=%d\n" % (k1, 4 * SLOT)
    out += "; @launch kernel=%s grid=(256,1,1) block=(512,1,1) lds=%d\n" % (k2, 98304)
    out += '.amdgcn_target "amdgcn-amd-amdhsa--gfx950"\n.text\n'
    for name, body in ((k1, kernel1()), (k2, kernel2())):
        out += ".globl %s\n.p2align 8\n.type %s,@function\n%s:\n" % (name, name, name) + body
    out += '.section .rodata,"a"\n'
    for name in (k1, k2):
        out += ".p2align 6\n" + kd(name, 256)
    dst = [x for x in sys.argv[1:] if not x.startswith("--")]
    open(dst[0] if dst else "cdna_kernels/%s.s" % NAME, "w").write(out)


if __name__ == "__main__":
    main()
```

```python
import sys
import os
sys.path.insert(0, os.path.dirname(os.path.abspath(__file__)))
from asmlib import Asm

NAME = "concat_heads__sliding_local_dilated__spectral_fnet__prompt"
OPT = set(x for x in sys.argv[1:] if x.startswith("--"))
STAMP = "--stamp" in OPT
NOITER = "--iter" not in OPT

SLOT = 36864
WS_LDS = 4 * SLOT
LDS_BYTES = 163840
U_OFF = 2 << 20
U_ROW = 272 * 16
FLAG_OFF = 6 << 20
SLEEP = int([x[8:] for x in OPT if x.startswith("--sleep=")][0]) if any(x.startswith("--sleep=") for x in OPT) else 2
STAMP_OFF = 8 << 20
WS_REC = 16 << 20
R_J = [(j * 5400) >> 6 for j in range(12)]

S_X, S_W1, S_W2, S_WS, S_WO, S_TR, S_TI, S_DBG, S_OUT = 28, 32, 36, 40, 64, 76, 80, 84, 88


def v(i, n=1):
    return "v%d" % i if n == 1 else "v[%d:%d]" % (i, i + n - 1)


def sr(i):
    return "s[%d:%d]" % (i, i + 3)


def srd(a, d, base, nbytes):
    a("s_mov_b32 s%d, s%d" % (d, base))
    a("s_and_b32 s%d, s%d, 0xffff" % (d + 1, base + 1))
    a("s_mov_b32 s%d, 0x%x" % (d + 2, nbytes))
    a("s_mov_b32 s%d, 0x20000" % (d + 3))


def stamp(a, slot, clk=False):
    if not STAMP or (NOITER and isinstance(slot, str)):
        return
    a("%s s[70:71]" % ("s_memtime" if clk else "s_memrealtime"))
    a("s_waitcnt lgkmcnt(0)")
    if isinstance(slot, str):
        a("s_mov_b32 s72, m0")
        a("s_add_u32 m0, %s, 12" % slot)
        a("v_writelane_b32 v249, s70, m0")
        a("s_mov_b32 m0, s72")
    else:
        a("v_writelane_b32 v249, s70, %d" % slot)


def stamp_init(a):
    if STAMP:
        a("v_mov_b32 v249, 0xa5a5a5a5")
        stamp(a, 30, clk=True)
        stamp(a, 29)


def stamp_flush(a):
    if not STAMP:
        return
    a("s_waitcnt vmcnt(0)")
    stamp(a, 31, clk=True)
    stamp(a, 28)
    a("s_lshl_b32 s92, s2, 3")
    a("s_add_u32 s92, s92, s3")
    a("s_lshl_b32 s92, s92, 7")
    a("s_add_u32 s92, s92, 0x%x" % STAMP_OFF)
    a("v_lshlrev_b32 v250, 2, v0")
    a("s_mov_b64 exec, 0xffffffff")
    a("buffer_store_dword v249, v250, %s, s92 offen" % sr(S_WS))


def loader_loop(a, tag, loads, nper, after_first=None):
    a("s_mov_b32 s53, 0")
    a("s_branch L%s_issue" % tag)
    a.label("L%s_wait" % tag)
    a("s_waitcnt vmcnt(%d)" % nper)
    stamp(a, "s53")
    a("s_barrier")
    a.label("L%s_issue" % tag)
    a("s_and_b32 s55, s53, 3")
    a("s_mul_i32 s55, s55, %d" % SLOT)
    a("s_add_u32 m0, s55, s52")
    for i, (vr, sd, so, masked) in enumerate(loads):
        if i:
            a("s_add_u32 m0, m0, 4096")
        if masked:
            a("s_mov_b64 exec, s[56:57]")
        a("buffer_load_dwordx4 v%d, %s, s%d offen lds" % (vr, sr(sd), so))
        if masked:
            a("s_mov_b64 exec, -1")
    a("s_add_u32 s50, s50, 128")
    a("s_add_u32 s51, s51, s54")
    a("s_add_u32 s53, s53, 1")
    a("s_cmp_lt_u32 s53, 2")
    a("s_cbranch_scc1 L%s_issue" % tag)
    if after_first:
        a("s_cmp_lg_u32 s53, 2")
        a("s_cbranch_scc1 L%s_nf" % tag)
        after_first()
        a.label("L%s_nf" % tag)
    a("s_cmp_lt_u32 s53, 8")
    a("s_cbranch_scc1 L%s_wait" % tag)
    a("s_waitcnt vmcnt(%d)" % nper)


def interleave(mfmas, reads, per=1, extra=None):
    out = []
    k = 0
    for i, m in enumerate(mfmas):
        out.append(m)
        n = per[i] if isinstance(per, (list, tuple)) else per
        out.extend(reads[k:k + n])
        k += n
        if extra and i in extra:
            out.extend(extra[i])
    assert k >= len(reads)
    return out


def lane_xaddr(a, dst0, dst1, t0, t1):
    a("v_and_b32 v%d, 15, v0" % t0)
    a("v_lshrrev_b32 v%d, 4, v0" % t1)
    a("v_lshrrev_b32 v%d, 1, v%d" % (dst1, t0))
    a("v_xor_b32 v%d, v%d, v%d" % (dst1, dst1, t1))
    a("v_lshlrev_b32 v%d, 4, v%d" % (dst1, dst1))
    a("v_lshl_add_u32 v%d, v%d, 7, v%d" % (dst0, t0, dst1))
    a("v_xor_b32 v%d, 64, v%d" % (dst1, dst0))


def lane_traddr(a, dst, t0, t1, t2):
    a("v_and_b32 v%d, 15, v0" % t0)
    a("v_lshrrev_b32 v%d, 4, v0" % t1)
    a("v_lshrrev_b32 v%d, 2, v%d" % (t2, t0))
    a("v_lshl_add_u32 v%d, v%d, 3, v%d" % (dst, t1, t2))
    a("v_lshlrev_b32 v%d, 7, v%d" % (dst, dst))
    a("v_and_b32 v%d, 3, v%d" % (t2, t0))
    a("v_lshl_add_u32 v%d, v%d, 3, v%d" % (dst, t2, dst))
    a("v_lshrrev_b32 v%d, 3, v%d" % (t2, t0))
    a("v_and_b32 v%d, 1, v%d" % (t1, t1))
    a("v_lshl_add_u32 v%d, v%d, 1, v%d" % (t2, t1, t2))
    a("v_lshl_add_u32 v%d, v%d, 5, v%d" % (dst, t2, dst))


def slot_scalars():
    return ["s_add_u32 s60, s60, 1", "s_and_b32 s61, s60, 3", "s_cmp_eq_u32 s61, 0", "s_cselect_b32 s61, s63, s62"]


def main_loop(a, tag, mf, rd, addr_regs, per):
    n = len(mf(0))
    a("s_barrier")
    stamp(a, 1)
    stamp(a, 26, clk=True)
    for r in rd(0, 0):
        a(r)
    a("s_waitcnt lgkmcnt(0)")
    a.label("L%s_loop" % tag)
    bar = n - 3
    extra = {1: slot_scalars(),
             bar - 1: ["s_cmp_eq_u32 s60, 8"],
             bar: ["s_waitcnt lgkmcnt(0)", "s_cbranch_scc1 L%s_nobar" % tag, "s_barrier", "L%s_nobar:" % tag],
             n - 2: ["v_add_u32 v%d, s61, v%d" % (r, r) for r in addr_regs[:2]],
             n - 1: ["v_add_u32 v%d, s61, v%d" % (r, r) for r in addr_regs[2:]]}
    for x in interleave(mf(0), rd(1, 1), per, extra):
        a(x)
    extra = {n - 2: ["s_cmp_lt_u32 s60, 8"], n - 1: ["s_waitcnt lgkmcnt(0)"]}
    for x in interleave(mf(1), rd(0, 0), per, extra):
        a(x)
    if STAMP and not NOITER:
        stamp(a, "s60")
        a("s_cmp_lt_u32 s60, 8")
    a("s_cbranch_scc1 L%s_loop" % tag)
    stamp(a, 27, clk=True)
    stamp(a, 2)


def kernel():
    a = Asm()
    a("s_cmp_ge_u32 s2, 256")
    a("s_cbranch_scc1 L_end")
    stamp_init(a)
    a("s_load_dwordx16 s[4:19], s[0:1], 0")
    a("s_load_dwordx4 s[20:23], s[0:1], 64")
    a("s_load_dwordx2 s[24:25], s[0:1], 80")
    a("v_lshrrev_b32 v1, 6, v0")
    a("v_and_b32 v0, 63, v0")
    a("v_readfirstlane_b32 s3, v1")
    a("s_and_b32 s26, s2, 7")
    a("s_lshr_b32 s27, s2, 3")
    a("s_lshl_b32 s68, s26, 2")
    a("s_and_b32 s69, s27, 3")
    a("s_add_u32 s68, s68, s69")
    a("s_lshr_b32 s69, s27, 2")
    a("s_cmp_ge_u32 s26, 6")
    a("s_cbranch_scc1 L_B")
    a("s_cmp_ge_u32 s26, 3")
    a("s_cselect_b32 s44, 1, 0")
    a("s_mul_i32 s45, s44, 3")
    a("s_sub_u32 s45, s26, s45")
    a("s_lshl_b32 s45, s45, 3")
    a("s_and_b32 s46, s27, 7")
    a("s_add_u32 s73, s45, s46")
    a("s_lshl_b32 s44, s44, 2")
    a("s_lshr_b32 s46, s27, 3")
    a("s_add_u32 s44, s44, s46")
    a("s_and_b32 s46, s73, 1")
    a("s_lshr_b32 s45, s73, 1")
    a("s_mul_i32 s47, s45, 5400")
    a("s_lshr_b32 s47, s47, 6")
    a("s_lshl_b32 s73, s73, 8")
    a("s_lshl_b32 s74, s44, 3")
    a("s_add_u32 s73, s73, s74")
    a("s_mov_b32 s74, 1")
    a("s_cmp_ge_u32 s3, 4")
    a("s_cbranch_scc1 L_Acons")
    a("v_lshrrev_b32 v1, 3, v0")
    a("v_and_b32 v2, 7, v0")
    a("v_lshrrev_b32 v3, 1, v1")
    a("s_and_b32 s48, s3, 1")
    a("s_lshl_b32 s49, s48, 2")
    a("v_or_b32 v4, s49, v3")
    a("v_xor_b32 v4, v4, v2")
    a("v_lshlrev_b32 v4, 4, v4")
    a("v_lshl_add_u32 v4, v1, 11, v4")
    a("s_lshl_b32 s49, s3, 3")
    a("s_add_u32 s49, s49, s47")
    a("s_lshl_b32 s49, s49, 1")
    a("s_add_u32 s49, s49, s46")
    a("s_lshl_b32 s49, s49, 10")
    a("v_add_u32 v10, s49, v4")
    a("v_add_u32 v11, 0x10000, v10")
    a("v_add_u32 v12, 0x20000, v10")
    a("v_and_b32 v5, 1, v3")
    a("s_lshl_b32 s49, s48, 1")
    a("v_or_b32 v5, s49, v5")
    a("v_lshlrev_b32 v5, 1, v5")
    a("v_xor_b32 v5, v5, v2")
    a("v_lshlrev_b32 v5, 4, v5")
    a("s_lshl_b32 s49, s3, 3")
    a("v_add_u32 v6, s49, v1")
    a("v_mul_u32_u24 v6, 3072, v6")
    a("s_lshl_b32 s49, s44, 7")
    a("v_add3_u32 v13, v6, v5, s49")
    for i in range(1, 6):
        a("v_add_u32 v%d, 0x%x, v13" % (13 + i, (i & 1) * 32 * 3072 + (i >> 1) * 1024))
    a("s_mov_b32 s50, 0")
    a("s_mov_b32 s51, 0")
    a("s_lshl_b32 s52, s3, 10")
    a("s_mov_b32 s54, %d" % (64 * 3072))
    a("s_waitcnt lgkmcnt(0)")
    srd(a, S_X, 4, 2048 * 1024)
    srd(a, S_W1, 6, 512 * 3072)
    stamp(a, 0)
    loader_loop(a, "LA", [(10 + i, S_X, 50, 0) for i in range(3)] + [(13 + i, S_W1, 51, 0) for i in range(6)], 9)
    a("s_branch L_tail")

    a.label("L_Acons")
    a("s_setprio 1")
    a("s_sub_u32 s48, s3, 4")
    Q, K, V = 32, 56, 80
    X = [104, 140]
    W = [128, 164]
    lane_xaddr(a, 4, 5, 1, 2)
    lane_traddr(a, 6, 1, 2, 3)
    a("s_lshl_b32 s49, s48, 5")
    a("v_xor_b32 v6, s49, v6")
    for r in range(32, 104):
        a("v_mov_b32 v%d, 0" % r)
    a("v_and_b32 v1, 15, v0")
    a("v_lshrrev_b32 v2, 4, v0")
    a("v_lshlrev_b32 v3, 2, v2")
    a("v_sub_u32 v3, v1, v3")
    a("v_mov_b32 v7, 0xf149f2ca")
    a("v_mov_b32 v16, 0")
    a("v_mov_b32 v17, 0")
    a("s_mov_b32 s56, 0xffff")
    a("s_mov_b32 s57, 0xffff0000")
    for r in range(4):
        a("v_subrev_u32 v24, %d, v3" % r)
        a("v_cmp_gt_u32 vcc, 8, v24")
        a("v_cndmask_b32 v%d, v7, v32, vcc" % (8 + r))
        a("v_mov_b32 v25, s%d" % (56 + (r & 1)))
        a("v_cndmask_b32 v25, v32, v25, vcc")
        a("v_or_b32 v%d, v%d, v25" % (16 + (r >> 1), 16 + (r >> 1)))
        a("v_add_u32 v24, 16, v24")
        a("v_cmp_gt_u32 vcc, 8, v24")
        a("v_cndmask_b32 v%d, v7, v32, vcc" % (12 + r))
    a("v_not_b32 v18, v16")
    a("v_not_b32 v19, v17")
    for r in range(4):
        a("v_mov_b32 v%d, 0x3f803f80" % (20 + r))
    a("s_lshl_b32 s49, s44, 2")
    a("s_add_u32 s49, s49, s48")
    a("s_lshl_b32 s49, s49, 1")
    a("s_add_u32 s49, s49, s46")
    a("s_lshl_b32 s49, s49, 10")
    a("s_add_u32 s49, s49, s47")
    a("v_and_b32 v25, 31, v0")
    a("v_add_u32 v26, s49, v25")
    a("v_lshlrev_b32 v26, 5, v26")
    a("v_lshrrev_b32 v24, 5, v0")
    a("v_lshl_add_u32 v26, v24, 4, v26")
    a("s_sub_u32 s49, s45, 1")
    a("s_mul_i32 s49, s49, 5400")
    a("s_lshr_b32 s49, s49, 6")
    a("s_add_u32 s49, s49, 96")
    a("s_sub_u32 s49, s49, s47")
    a("s_cmp_eq_u32 s45, 0")
    a("s_cselect_b32 s49, 0, s49")
    a("v_mov_b32 v24, 0x80000000")
    a("v_cmp_gt_u32 vcc, s49, v25")
    a("v_cndmask_b32 v27, v26, v24, vcc")
    a("s_mov_b32 s60, 0")
    a("s_mov_b32 s62, %d" % SLOT)
    a("s_mov_b32 s63, %d" % (-3 * SLOT))
    a("s_waitcnt lgkmcnt(0)")
    srd(a, S_WS, 24, WS_REC)
    a("s_add_u32 s49, s2, s48")
    a("s_cmp_lg_u32 s49, 0")
    a("s_cbranch_scc1 L_notag")
    srd(a, S_DBG, 22, 256)
    a("s_memrealtime s[56:57]")
    a("s_waitcnt lgkmcnt(0)")
    a("s_or_b32 s57, s57, 0x40000000")
    a("v_mov_b32 v24, s56")
    a("v_mov_b32 v25, s57")
    a("s_mov_b64 exec, 1")
    a("buffer_store_dwordx2 v[24:25], v32, %s, 0 offen sc1" % sr(S_DBG))
    a("s_mov_b64 exec, -1")
    a.label("L_notag")
    stamp(a, 0)

    def readsA(st, kk):
        r = []
        for t in range(3):
            for hh in range(2):
                r.append("ds_read_b64_tr_b16 %s, v6 offset:%d" % (v(W[st] + 4 * t + 2 * hh, 2),
                                                                 12288 + t * 8192 + kk * 4096 + hh * 512))
        for rt in range(6):
            r.append("ds_read_b128 %s, v%d offset:%d" % (v(X[st] + 4 * rt, 4), 4 + kk, rt * 2048))
        return r

    def mfmaA(st):
        m = []
        for rt in range(6):
            x = v(X[st] + 4 * rt, 4)
            m.append("v_mfma_f32_16x16x32_bf16 %s, %s, %s, %s" % (v(Q + 4 * rt, 4), v(W[st], 4), x, v(Q + 4 * rt, 4)))
            m.append("v_mfma_f32_16x16x32_bf16 %s, %s, %s, %s" % (v(K + 4 * rt, 4), v(W[st] + 4, 4), x, v(K + 4 * rt, 4)))
            m.append("v_mfma_f32_16x16x32_bf16 %s, %s, %s, %s" % (v(V + 4 * rt, 4), x, v(W[st] + 8, 4), v(V + 4 * rt, 4)))
        return m

    main_loop(a, "A", mfmaA, readsA, [4, 6, 5], [2, 2, 2, 1, 1, 1, 1, 1, 1] + [0] * 9)
    Qp, Kp, Vp = 104, 116, 128
    for (src, dst) in ((Q, Qp), (K, Kp)):
        for b in range(6):
            a("v_cvt_pk_bf16_f32 v%d, v%d, v%d" % (dst + 2 * b, src + 4 * b, src + 4 * b + 1))
            a("v_cvt_pk_bf16_f32 v%d, v%d, v%d" % (dst + 2 * b + 1, src + 4 * b + 2, src + 4 * b + 3))
    Sc, Sp = 32, 56
    for b in range(6):
        a("v_mfma_f32_16x16x16_bf16 %s, %s, %s, v[8:11]" % (v(Sc + 4 * b, 4), v(Kp + 2 * b, 2), v(Qp + 2 * b, 2)))
        a("v_cvt_pk_bf16_f32 v%d, v%d, v%d" % (Vp + 2 * b, V + 4 * b, V + 4 * b + 1))
        if b:
            a("v_mfma_f32_16x16x16_bf16 %s, %s, %s, v[12:15]" % (v(Sp + 4 * b, 4), v(Kp + 2 * b - 2, 2), v(Qp + 2 * b, 2)))
        a("v_cvt_pk_bf16_f32 v%d, v%d, v%d" % (Vp + 2 * b + 1, V + 4 * b + 2, V + 4 * b + 3))
    a("s_mov_b32 s56, 0x3eb8aa3b")
    a("s_mov_b32 s57, 0xffff0000")
    T = 140
    for b in range(1, 6):
        for r in range(4):
            a("v_max_f32 v%d, v%d, v%d" % (Sc + 4 * b + r, Sc + 4 * b + r, Sp + 4 * b + r))
    for b in range(6):
        a("v_cvt_pk_bf16_f32 v%d, v%d, v%d" % (T + 4 * b, Sc + 4 * b, Sc + 4 * b + 1))
        a("v_cvt_pk_bf16_f32 v%d, v%d, v%d" % (T + 4 * b + 1, Sc + 4 * b + 2, Sc + 4 * b + 3))
    for b in range(6):
        a("v_lshlrev_b32 v%d, 16, v%d" % (Sc + 4 * b, T + 4 * b))
        a("v_and_b32 v%d, s57, v%d" % (Sc + 4 * b + 1, T + 4 * b))
        a("v_lshlrev_b32 v%d, 16, v%d" % (Sc + 4 * b + 2, T + 4 * b + 1))
        a("v_and_b32 v%d, s57, v%d" % (Sc + 4 * b + 3, T + 4 * b + 1))
    for b in range(6):
        a("v_max3_f32 v%d, v%d, v%d, v%d" % (T + 4 * b, Sc + 4 * b, Sc + 4 * b + 1, Sc + 4 * b + 2))
    for b in range(6):
        a("v_max_f32 v%d, v%d, v%d" % (T + 4 * b, T + 4 * b, Sc + 4 * b + 3))
    for sw in ("v_permlane32_swap_b32", "v_permlane16_swap_b32"):
        for b in range(6):
            a("v_mov_b32 v%d, v%d" % (T + 4 * b + 1, T + 4 * b))
        for b in range(6):
            a("%s v%d, v%d" % (sw, T + 4 * b, T + 4 * b + 1))
        for b in range(6):
            a("v_max_f32 v%d, v%d, v%d" % (T + 4 * b, T + 4 * b, T + 4 * b + 1))
    for b in range(6):
        a("v_mul_f32 v%d, s56, v%d" % (T + 4 * b, T + 4 * b))
    for b in range(6):
        for r in range(4):
            a("v_fma_f32 v%d, v%d, s56, -v%d" % (Sc + 4 * b + r, Sc + 4 * b + r, T + 4 * b))
    for b in range(6):
        for r in range(4):
            a("v_exp_f32 v%d, v%d" % (Sc + 4 * b + r, Sc + 4 * b + r))
    for b in range(6):
        a("v_cvt_pk_bf16_f32 v%d, v%d, v%d" % (T + 4 * b + 2, Sc + 4 * b, Sc + 4 * b + 1))
        a("v_cvt_pk_bf16_f32 v%d, v%d, v%d" % (T + 4 * b + 3, Sc + 4 * b + 2, Sc + 4 * b + 3))
    Oa, Sm = 80, 56
    a("v_mfma_f32_16x16x16_bf16 %s, %s, %s, 0" % (v(Oa, 4), v(Vp, 2), v(T + 2, 2)))
    a("v_mfma_f32_16x16x16_bf16 %s, v[20:21], %s, 0" % (v(Sm, 4), v(T + 2, 2)))
    for b in range(1, 6):
        a("v_and_b32 v%d, v18, v%d" % (T + 4 * b, T + 4 * b + 2))
        a("v_and_b32 v%d, v19, v%d" % (T + 4 * b + 1, T + 4 * b + 3))
        a("v_and_b32 v%d, v16, v%d" % (T + 4 * b + 2, T + 4 * b + 2))
        a("v_and_b32 v%d, v17, v%d" % (T + 4 * b + 3, T + 4 * b + 3))
        if b > 1:
            c = b - 1
            a("v_mfma_f32_16x16x32_bf16 %s, %s, %s, 0" % (v(Oa + 4 * c, 4), v(Vp + 2 * c - 2, 4), v(T + 4 * c, 4)))
            a("v_mfma_f32_16x16x32_bf16 %s, v[20:23], %s, 0" % (v(Sm + 4 * c, 4), v(T + 4 * c, 4)))
    a("v_rcp_f32 v%d, v%d" % (Sm, Sm))
    a("v_mfma_f32_16x16x32_bf16 %s, %s, %s, 0" % (v(Oa + 20, 4), v(Vp + 8, 4), v(T + 20, 4)))
    a("v_mfma_f32_16x16x32_bf16 %s, v[20:23], %s, 0" % (v(Sm + 20, 4), v(T + 20, 4)))
    for b in range(6):
        if b < 5:
            a("v_rcp_f32 v%d, v%d" % (Sm + 4 * b + 4, Sm + 4 * b + 4))
        for r in range(4):
            a("v_mul_f32 v%d, v%d, v%d" % (Oa + 4 * b + r, Oa + 4 * b + r, Sm + 4 * b))
        a("v_cvt_pk_bf16_f32 v%d, v%d, v%d" % (32 + 2 * b, Oa + 4 * b, Oa + 4 * b + 1))
        a("v_cvt_pk_bf16_f32 v%d, v%d, v%d" % (32 + 2 * b + 1, Oa + 4 * b + 2, Oa + 4 * b + 3))
        if b & 1:
            p = b >> 1
            a("v_permlane16_swap_b32 v%d, v%d" % (32 + 4 * p, 32 + 4 * p + 2))
            a("v_permlane16_swap_b32 v%d, v%d" % (32 + 4 * p + 1, 32 + 4 * p + 3))
            a("buffer_store_dwordx4 %s, v%d, %s, 0 offen offset:%d sc1" % (v(32 + 4 * p, 4), 27 if p == 0 else 26,
                                                                         sr(S_WS), 1024 * p))
    stamp(a, 3)
    a("s_branch L_F")

    a.label("L_B")
    a("s_sub_u32 s45, s26, 6")
    a("s_lshl_b32 s45, s45, 3")
    a("s_and_b32 s46, s27, 7")
    a("s_add_u32 s45, s45, s46")
    a("s_lshr_b32 s44, s27, 3")
    a("s_add_u32 s73, s44, 24")
    a("s_lshl_b32 s73, s73, 8")
    a("s_lshl_b32 s74, s45, 3")
    a("s_add_u32 s73, s73, s74")
    a("s_mov_b32 s74, 0xff")
    a("s_cmp_ge_u32 s3, 4")
    a("s_cbranch_scc1 L_Bcons")
    a("v_lshrrev_b32 v1, 3, v0")
    a("v_and_b32 v2, 7, v0")
    a("v_lshrrev_b32 v3, 1, v1")
    a("s_and_b32 s48, s3, 1")
    a("s_lshl_b32 s49, s48, 2")
    a("v_or_b32 v4, s49, v3")
    a("v_xor_b32 v4, v4, v2")
    a("v_lshlrev_b32 v4, 4, v4")
    a("s_lshl_b32 s49, s3, 3")
    a("v_add_u32 v5, s49, v1")
    a("v_lshl_add_u32 v10, v5, 16, v4")
    a("s_lshl_b32 s49, s45, 12")
    a("v_add_u32 v10, s49, v10")
    for i in range(1, 4):
        a("v_add_u32 v%d, %d, v10" % (10 + i, 1024 * i))
    a("v_lshl_add_u32 v14, v5, 10, v4")
    a("s_lshl_b32 s49, s44, 16")
    a("v_add_u32 v14, s49, v14")
    a("v_add_u32 v15, 0x8000, v14")
    a("s_mov_b32 s50, 0")
    a("s_mov_b32 s51, 0")
    a("s_lshl_b32 s52, s3, 10")
    a("s_mov_b32 s54, 128")
    a("s_add_u32 s49, s44, s3")
    a("s_cmp_eq_u32 s49, 0")
    a("s_cselect_b32 s56, 0xffffff00, -1")
    a("s_mov_b32 s57, -1")
    a("s_waitcnt lgkmcnt(0)")
    srd(a, S_X, 10, 2048 * 1024)
    srd(a, S_W1, 16, 512 * 1024)
    srd(a, S_W2, 18, 512 * 1024)
    stamp(a, 0)

    def prefill():
        a("s_cmp_eq_u32 s56, -1")
        a("s_cbranch_scc1 LLB_nf")
        a("v_and_b32 v6, 3, v1")
        a("v_mul_u32_u24 v6, %d, v6" % SLOT)
        a("v_lshl_add_u32 v6, v2, 4, v6")
        for r in range(4):
            a("v_mov_b32 v%d, 0xbf803f80" % (20 + r))
        a("ds_write_b128 v6, v[20:23] offset:24576")
        a("s_waitcnt lgkmcnt(0)")

    loader_loop(a, "LB", [(10 + i, S_X, 50, 0) for i in range(4)] +
                [(14, S_W1, 51, 0), (15, S_W1, 51, 0), (14, S_W2, 51, 1), (15, S_W2, 51, 0)], 8, prefill)

    a.label("L_tail")
    a("s_barrier")
    srd(a, S_WO, 8, 512 * 1024)
    srd(a, S_TR, 12, 2048 * 4096)
    srd(a, S_TI, 14, 2048 * 4096)
    a("v_and_b32 v8, 1, v3")
    a("s_lshl_b32 s49, s48, 1")
    a("v_or_b32 v8, s49, v8")
    a("v_lshlrev_b32 v8, 1, v8")
    a("v_xor_b32 v8, v8, v2")
    a("v_lshlrev_b32 v8, 4, v8")
    a("s_lshl_b32 s49, s3, 3")
    a("v_add_u32 v9, s49, v1")
    a("v_lshl_add_u32 v20, v9, 10, v8")
    a("s_lshl_b32 s50, s69, 7")
    a("v_add_u32 v20, s50, v20")
    a("s_mov_b32 m0, s52")
    a("s_mov_b32 s54, 0")
    for i in range(16):
        if i:
            a("s_add_u32 m0, m0, 4096")
            a("s_add_u32 s54, s54, 0x8000")
        a("buffer_load_dwordx4 v20, %s, s54 offen lds" % sr(S_WO))
        if i == 3:
            a("s_waitcnt vmcnt(4)")
            a("s_barrier")
    a("s_lshl_b32 s49, s48, 2")
    a("v_or_b32 v8, s49, v3")
    a("v_xor_b32 v8, v8, v2")
    a("v_lshlrev_b32 v8, 4, v8")
    a("v_lshl_add_u32 v21, v9, 17, v8")
    a("s_lshl_b32 s49, s68, 12")
    a("v_add_u32 v21, s49, v21")
    a("s_mov_b32 s54, 0x%x" % (32 * 32 * 4096))
    a("s_add_u32 m0, s52, %d" % WS_LDS)
    for i in range(4):
        if i:
            a("s_add_u32 m0, m0, 4096")
        a("buffer_load_dwordx4 v21, %s, %s offen lds" % (sr(S_TI if i >> 1 else S_TR), "s54" if i & 1 else "0"))
    srd(a, S_WS, 24, WS_REC)
    srd(a, S_DBG, 22, 256)
    srd(a, S_OUT, 20, 2048 * 2048)
    a("v_and_b32 v1, 15, v0")
    a("v_lshrrev_b32 v2, 4, v0")
    a("v_and_b32 v3, 1, v2")
    a("v_lshrrev_b32 v4, 1, v2")
    a("s_lshl_b32 s49, s68, 2")
    a("s_add_u32 s49, s49, s3")
    a("s_lshl_b32 s49, s49, 4")
    a("v_add_u32 v5, s49, v1")
    a("v_lshlrev_b32 v6, 16, v4")
    a("v_lshl_add_u32 v6, v5, 5, v6")
    a("v_lshl_add_u32 v6, v3, 4, v6")
    a("v_and_b32 v7, 1023, v5")
    a("v_lshrrev_b32 v8, 10, v5")
    a("v_lshl_add_u32 v7, v7, 1, v8")
    a("v_lshlrev_b32 v3, 5, v3")
    a("v_lshl_add_u32 v3, v4, 4, v3")
    a("v_add_u32 v3, s50, v3")
    a("v_lshl_add_u32 v13, v7, 11, v3")
    lane_traddr(a, 14, 8, 9, 10)
    for Tt in range(1, 4):
        a("v_xor_b32 v%d, %d, v14" % (14 + Tt, 32 * Tt))
    E = [r + 96 for r in R_J]
    jof = lambda r: [j for j in range(12) if E[j] > r][0]
    lo = sum(jof(64 * i) << (4 * i) for i in range(16))
    hi = sum(jof(64 * i + 63) << (4 * i) for i in range(16))
    a("s_and_b32 s49, s68, 15")
    a("s_lshl_b32 s49, s49, 2")
    a("s_lshr_b32 s51, s68, 4")
    for k, tab in ((0, lo), (1, hi)):
        a("s_mov_b32 s56, 0x%x" % (tab & 0xffffffff))
        a("s_mov_b32 s57, 0x%x" % (tab >> 32))
        a("s_lshr_b64 s[56:57], s[56:57], s49")
        a("s_and_b32 s56, s56, 15")
        a("s_lshl_b32 s56, s56, 1")
        a("s_add_u32 s56, s56, s51")
        a("s_lshl_b32 s%d, s56, 8" % (58 + k))
    a("s_sub_u32 s59, s59, 64")
    a("s_sub_u32 s56, 7, s69")
    a("s_sub_u32 s57, 8, s69")
    a("s_and_b32 s57, s57, 3")
    a("s_cmp_lt_u32 s69, 4")
    a("s_cselect_b32 s56, s69, s56")
    a("s_cselect_b32 s57, s69, s57")
    a("s_lshl_b32 s49, s26, 2")
    a("s_add_u32 s49, s49, 24")
    for k in range(2):
        a("s_add_u32 s%d, s%d, s49" % (56 + k, 56 + k))
        a("s_lshl_b32 s%d, s%d, 8" % (56 + k, 56 + k))
        a("s_sub_u32 s%d, s%d, %d" % (56 + k, 56 + k, 128 * (k + 1)))
    a("v_mov_b32 v18, s57")
    for lim, reg in ((32, 56), (16, 59), (8, 58)):
        a("v_mov_b32 v19, s%d" % reg)
        a("v_cmp_gt_u32 vcc, %d, v0" % lim)
        a("v_cndmask_b32 v18, v18, v19, vcc")
    a("v_lshl_add_u32 v18, v0, 3, v18")
    a("v_add_u32 v18, 0x%x, v18" % FLAG_OFF)
    a("v_lshlrev_b32 v19, 10, v0")
    a("s_add_u32 s73, s73, 0x%x" % FLAG_OFF)
    a("v_add_u32 v19, s73, v19")
    a("s_setprio 2")
    a("s_cmp_lg_u32 s3, 0")
    a("s_cbranch_scc1 L_gottag")
    a("v_mov_b32 v12, 0")
    a("s_mov_b32 s49, 0")
    a.label("L_tag")
    a("buffer_load_dwordx2 v[22:23], v12, %s, 0 offen sc1" % sr(S_DBG))
    a("s_add_u32 s49, s49, 1")
    a("s_waitcnt vmcnt(0)")
    a("v_readfirstlane_b32 s94, v22")
    a("v_readfirstlane_b32 s95, v23")
    a("s_cmp_ge_u32 s49, 0x4000")
    a("s_cbranch_scc1 L_gottag")
    a("s_cmp_eq_u32 s95, 0")
    a("s_cbranch_scc1 L_tag")
    a.label("L_gottag")
    a("s_waitcnt vmcnt(0)")
    stamp(a, 4)
    a("s_barrier")
    stamp(a, 5)
    a("s_cmp_lg_u32 s3, 0")
    a("s_cbranch_scc1 L_nosig")
    a("s_mov_b32 exec_lo, s74")
    a("s_mov_b32 exec_hi, 0")
    a("buffer_store_dwordx2 v[22:23], v19, %s, 0 offen sc1" % sr(S_WS))
    a("s_mov_b64 exec, -1")
    a.label("L_nosig")
    OF, ACC, WF = 24, 88, 104
    NPRE = 9

    def rd(ks):
        r = []
        for Tt in range(4):
            for hh in range(2):
                r.append("ds_read_b64_tr_b16 %s, v%d offset:%d" % (v(WF + 16 * (ks % NPRE) + 4 * Tt + 2 * hh, 2), 14 + Tt,
                                                                  ks * 4096 + hh * 512))
        return r

    def mm(ks):
        return ["v_mfma_f32_16x16x32_bf16 %s, %s, %s, %s" % (v(ACC + 4 * Tt, 4), v(WF + 16 * (ks % NPRE) + 4 * Tt, 4),
                                                            v(OF + 4 * ks, 4), v(ACC + 4 * Tt, 4) if ks else "0")
                for Tt in range(4)]

    for ks in range(NPRE):
        for x in rd(ks):
            a(x)
    a("s_cmp_lg_u32 s3, 0")
    a("s_cbranch_scc1 L_polled")
    a("s_mov_b32 exec_hi, 0xffff")
    a("s_mov_b32 s49, 0")
    a.label("L_poll")
    a("buffer_load_dwordx2 v[20:21], v18, %s, 0 offen sc1" % sr(S_WS))
    a("s_add_u32 s49, s49, 1")
    a("s_waitcnt vmcnt(0)")
    a("v_cmp_eq_u64 vcc, s[94:95], v[20:21]")
    a("s_cmp_eq_u64 vcc, exec")
    a("s_cbranch_scc1 L_pdone")
    if SLEEP:
        a("s_sleep %d" % SLEEP)
    a("s_cmp_lt_u32 s49, 0x4000")
    a("s_cbranch_scc1 L_poll")
    a.label("L_pdone")
    a("s_mov_b64 exec, -1")
    a.label("L_polled")
    a("s_waitcnt lgkmcnt(0)")
    stamp(a, 6)
    a("s_barrier")
    stamp(a, 7)
    a("s_mov_b32 s54, 0")
    for c in range(16):
        if c:
            a("s_add_u32 s54, s54, 0x20000")
        a("buffer_load_dwordx4 %s, v6, %s, s54 offen sc1" % (v(OF + 4 * c, 4), sr(S_WS)))
    for ks in range(16):
        if ks < NPRE:
            a("s_waitcnt vmcnt(%d)" % (15 - ks))
        else:
            a("s_waitcnt vmcnt(%d) lgkmcnt(%d)" % (15 - ks, min(15, 8 * (15 - ks))))
        if ks == 0:
            stamp(a, 8)
        for x in mm(ks):
            a(x)
        if ks + NPRE < 16:
            for x in rd(ks + NPRE):
                a(x)
    stamp(a, 9)
    tmp = 24
    for Tt in range(4):
        a("v_cvt_pk_bf16_f32 v%d, v%d, v%d" % (tmp + 2 * Tt, ACC + 4 * Tt, ACC + 4 * Tt + 1))
        a("v_cvt_pk_bf16_f32 v%d, v%d, v%d" % (tmp + 2 * Tt + 1, ACC + 4 * Tt + 2, ACC + 4 * Tt + 3))
    for p in range(2):
        a("v_permlane16_swap_b32 v%d, v%d" % (tmp + 4 * p, tmp + 4 * p + 2))
        a("v_permlane16_swap_b32 v%d, v%d" % (tmp + 4 * p + 1, tmp + 4 * p + 3))
    for p in range(2):
        a("buffer_store_dwordx4 %s, v13, %s, 0 offen offset:%d" % (v(tmp + 4 * p, 4), sr(S_OUT), 64 * p))
    stamp(a, 10)
    stamp_flush(a)
    a("s_endpgm")

    a.label("L_Bcons")
    a("s_setprio 1")
    a("s_sub_u32 s48, s3, 4")
    Aa, Ba = 32, 64
    X = [96, 136]
    W = [128, 168]
    CR, NCI, NCR = 176, 184, 192
    lane_xaddr(a, 4, 5, 1, 2)
    a("s_lshl_b32 s49, s48, 11")
    a("s_add_u32 s49, s49, 16384")
    a("v_add_u32 v6, s49, v4")
    a("v_add_u32 v7, s49, v5")
    a("v_lshlrev_b32 v3, 14, v1")
    a("v_lshl_add_u32 v3, v2, 3, v3")
    a("v_add_u32 v8, 0x40000, v3")
    for r in range(32, 96):
        a("v_mov_b32 v%d, 0" % r)
    a("s_add_u32 s49, s44, s48")
    a("s_cmp_eq_u32 s49, 0")
    a("s_cselect_b32 s56, 0x00010001, 0")
    a("s_mov_b32 s57, s56")
    a("v_mul_u32_u24 v10, %d, v2" % (64 * U_ROW))
    a("s_mul_i32 s49, s45, %d" % U_ROW)
    a("s_add_u32 s49, s49, 0x%x" % U_OFF)
    a("v_add_u32 v10, s49, v10")
    a("v_add_u32 v11, %d, v10" % (256 * 16))
    a("v_mov_b32 v12, 0x80000000")
    a("v_cndmask_b32 v11, v12, v11, s[56:57]")
    a("s_lshl_b32 s49, s44, 2")
    a("s_add_u32 s49, s49, s48")
    a("s_lshl_b32 s49, s49, 4")
    a("v_add_u32 v12, s49, v1")
    a("v_lshl_add_u32 v10, v12, 4, v10")
    a("s_mov_b32 s60, 0")
    a("s_mov_b32 s62, %d" % SLOT)
    a("s_mov_b32 s63, %d" % (-3 * SLOT))
    a("s_waitcnt lgkmcnt(0)")
    srd(a, S_W1, 16, 512 * 1024)
    srd(a, S_W2, 18, 512 * 1024)
    srd(a, S_WS, 24, WS_REC)
    for tau, ar in ((0, 3), (1, 8)):
        for hh in range(2):
            a("buffer_load_dwordx2 %s, v%d, %s, 0 offen offset:%d" % (v(CR + 4 * tau + 2 * hh, 2), ar, sr(S_W1), 32 * hh))
            a("buffer_load_dwordx2 %s, v%d, %s, 0 offen offset:%d" % (v(NCI + 4 * tau + 2 * hh, 2), ar, sr(S_W2), 32 * hh))
    stamp(a, 0)

    def readsB(st, kk):
        r = []
        for t in range(2):
            r.append("ds_read_b128 %s, v%d offset:%d" % (v(W[st] + 4 * t, 4), 6 + kk, t * 8192))
        for rt in range(8):
            r.append("ds_read_b128 %s, v%d offset:%d" % (v(X[st] + 4 * rt, 4), 4 + kk, rt * 2048))
        return r

    def mfmaB(st):
        m = []
        for rt in range(8):
            for t, acc in ((0, Aa), (1, Ba)):
                m.append("v_mfma_f32_16x16x32_bf16 %s, %s, %s, %s" % (v(acc + 4 * rt, 4), v(X[st] + 4 * rt, 4),
                                                                     v(W[st] + 4 * t, 4), v(acc + 4 * rt, 4)))
        return m

    main_loop(a, "B", mfmaB, readsB, [4, 6, 5, 7], [2, 2, 1, 1, 1, 1, 1, 1] + [0] * 8)
    PA, PB = 96, 112
    a("s_waitcnt vmcnt(0)")
    a("s_mov_b32 s58, 0x80008000")
    for r in range(8):
        a("v_xor_b32 v%d, s58, v%d" % (NCI + r, NCI + r))
        a("v_xor_b32 v%d, s58, v%d" % (NCR + r, CR + r))
    for rt in range(8):
        for (src, dst) in ((Aa, PA), (Ba, PB)):
            a("v_cvt_pk_bf16_f32 v%d, v%d, v%d" % (dst + 2 * rt, src + 4 * rt, src + 4 * rt + 1))
            a("v_cvt_pk_bf16_f32 v%d, v%d, v%d" % (dst + 2 * rt + 1, src + 4 * rt + 2, src + 4 * rt + 3))
    Ur, Un = 32, 64

    def ustore(voff, taus=(0, 1)):
        for tau in taus:
            for r in range(4):
                d = 136 + 4 * (4 * tau + r)
                for half, src in ((0, Ur), (1, Un)):
                    for p in range(2):
                        a("v_cvt_pk_bf16_f32 v%d, v%d, v%d" % (d + 2 * half + p, src + 16 * tau + 8 * p + r,
                                                              src + 16 * tau + 8 * p + 4 + r))
                a("s_mov_b32 s59, %d" % ((16 * tau + r) * 16 * U_ROW))
                a("buffer_store_dwordx4 %s, v%d, %s, s59 offen sc1" % (v(d, 4), voff, sr(S_WS)))

    a("s_cmp_eq_u32 s56, 0")
    a("s_cbranch_scc1 L_Bnorm")
    for tau in range(2):
        for sl in range(4):
            a("v_mfma_f32_16x16x32_bf16 %s, %s, %s, 0" % (v(Ur + 16 * tau + 4 * sl, 4), v(CR + 4 * tau, 4), v(PB + 4 * sl, 4)))
            a("v_mfma_f32_16x16x32_bf16 %s, %s, %s, 0" % (v(Un + 16 * tau + 4 * sl, 4), v(NCI + 4 * tau, 4), v(PB + 4 * sl, 4)))
    ustore(11)
    a("v_mov_b32 v9, 0")
    for r in range(16):
        a("v_cndmask_b32 v%d, v%d, v9, s[56:57]" % (PB + r, PB + r))
    a.label("L_Bnorm")
    for tau in range(2):
        for sl in range(4):
            a("v_mfma_f32_16x16x32_bf16 %s, %s, %s, 0" % (v(Ur + 16 * tau + 4 * sl, 4), v(CR + 4 * tau, 4), v(PA + 4 * sl, 4)))
            a("v_mfma_f32_16x16x32_bf16 %s, %s, %s, 0" % (v(Un + 16 * tau + 4 * sl, 4), v(NCI + 4 * tau, 4), v(PA + 4 * sl, 4)))
        for sl in range(4):
            d = v(Ur + 16 * tau + 4 * sl, 4)
            a("v_mfma_f32_16x16x32_bf16 %s, %s, %s, %s" % (d, v(NCI + 4 * tau, 4), v(PB + 4 * sl, 4), d))
            d = v(Un + 16 * tau + 4 * sl, 4)
            a("v_mfma_f32_16x16x32_bf16 %s, %s, %s, %s" % (d, v(NCR + 4 * tau, 4), v(PB + 4 * sl, 4), d))
    ustore(10)
    stamp(a, 3)

    a.label("L_F")
    srd(a, S_OUT, 20, 2048 * 2048)
    a("v_and_b32 v1, 15, v0")
    a("v_lshrrev_b32 v2, 4, v0")
    a("v_lshrrev_b32 v4, 1, v2")
    a("s_lshl_b32 s52, s69, 2")
    a("s_add_u32 s52, s52, s48")
    a("s_lshl_b32 s52, s52, 4")
    a("v_add_u32 v12, s52, v1")
    a("v_sub_u32 v13, 512, v12")
    a("v_min_u32 v12, v12, v13")
    a("v_mul_u32_u24 v13, %d, v2" % U_ROW)
    a("v_lshl_add_u32 v12, v12, 4, v13")
    a("s_mul_i32 s53, s68, %d" % (16 * U_ROW))
    a("s_add_u32 s53, s53, 0x%x" % U_OFF)
    a("v_add_u32 v12, s53, v12")
    a("v_and_b32 v13, 31, v0")
    a("v_lshl_add_u32 v13, v13, 5, s68")
    a("v_sub_u32 v14, 2048, v13")
    a("s_cmp_ge_u32 s69, 4")
    a("s_cselect_b64 s[56:57], -1, 0")
    a("v_cndmask_b32 v13, v13, v14, s[56:57]")
    a("v_xor_b32 v14, 1024, v13")
    a("v_and_b32 v13, 2047, v13")
    a("v_and_b32 v14, 2047, v14")
    a("s_lshl_b32 s52, s52, 1")
    a("s_add_u32 s52, s52, 1024")
    a("v_lshl_add_u32 v15, v4, 4, s52")
    a("v_lshl_add_u32 v13, v13, 11, v15")
    a("v_lshl_add_u32 v14, v14, 11, v15")
    a("v_lshrrev_b32 v16, 1, v1")
    a("v_xor_b32 v16, v16, v4")
    a("v_lshlrev_b32 v16, 4, v16")
    a("v_lshl_add_u32 v16, v1, 7, v16")
    a("v_and_b32 v15, 1, v2")
    a("v_lshl_add_u32 v16, v15, 3, v16")
    a("v_add_u32 v16, %d, v16" % WS_LDS)
    for c in range(1, 4):
        a("v_xor_b32 v%d, %d, v16" % (16 + c, 32 * c))
    a("s_waitcnt vmcnt(0)")
    stamp(a, 4)
    a("s_barrier")
    stamp(a, 5)
    WSF, UF, ACC = 176, 24, 40
    for rho in range(4):
        for c in range(4):
            a("ds_read_b64 %s, v%d offset:%d" % (v(WSF + 16 * rho + 4 * c, 2), 16 + c, rho * 2048))
            a("ds_read_b64 %s, v%d offset:%d" % (v(WSF + 16 * rho + 4 * c + 2, 2), 16 + c, 8192 + rho * 2048))
    a("s_waitcnt lgkmcnt(0)")
    a("s_barrier")
    stamp(a, 7)
    for c in range(4):
        a("s_mov_b32 s54, %d" % (4 * U_ROW * c))
        a("buffer_load_dwordx4 %s, v12, %s, s54 offen sc1" % (v(UF + 4 * c, 4), sr(S_WS)))
    for c in range(4):
        a("s_waitcnt vmcnt(%d)" % (3 - c))
        if c == 0:
            stamp(a, 8)
        for rho in range(4):
            a("v_mfma_f32_16x16x32_bf16 %s, %s, %s, %s" % (v(ACC + 4 * rho, 4), v(UF + 4 * c, 4), v(WSF + 16 * rho + 4 * c, 4),
                                                          v(ACC + 4 * rho, 4) if c else "0"))
    stamp(a, 9)
    tmp = 56
    for rho in range(4):
        a("v_cvt_pk_bf16_f32 v%d, v%d, v%d" % (tmp + 2 * rho, ACC + 4 * rho, ACC + 4 * rho + 1))
        a("v_cvt_pk_bf16_f32 v%d, v%d, v%d" % (tmp + 2 * rho + 1, ACC + 4 * rho + 2, ACC + 4 * rho + 3))
    for p in range(2):
        a("v_permlane16_swap_b32 v%d, v%d" % (tmp + 4 * p, tmp + 4 * p + 2))
        a("v_permlane16_swap_b32 v%d, v%d" % (tmp + 4 * p + 1, tmp + 4 * p + 3))
    for p in range(2):
        a("buffer_store_dwordx4 %s, v%d, %s, 0 offen" % (v(tmp + 4 * p, 4), 13 + p, sr(S_OUT)))
    stamp(a, 10)
    stamp_flush(a)
    a.label("L_end")
    a("s_endpgm")
    return a.finish()


def kd(name, vgpr, sgpr=102):
    acc = (vgpr + 3) // 4 * 4
    return """.amdhsa_kernel %s
  .amdhsa_next_free_vgpr %d
  .amdhsa_next_free_sgpr %d
  .amdhsa_accum_offset %d
  .amdhsa_group_segment_fixed_size 0
  .amdhsa_kernarg_size 88
  .amdhsa_user_sgpr_count 2
  .amdhsa_user_sgpr_kernarg_segment_ptr 1
  .amdhsa_system_sgpr_workgroup_id_x 1
.end_amdhsa_kernel
""" % (name, vgpr, sgpr, acc)


def main():
    k = NAME + "_kernel"
    head = open(os.path.join(os.path.dirname(os.path.abspath(__file__)), "header.txt")).read()
    out = head
    if "--list" in OPT:
        out += "; @launch kernel=%s grid=(256,1,1) block=(512,1,1) lds=%d\n" % (k, LDS_BYTES)
    else:
        out += "; @launch grid=(256,1,1) block=(512,1,1) lds=%d\n" % LDS_BYTES
    out += '.amdgcn_target "amdgcn-amd-amdhsa--gfx950"\n.text\n'
    out += ".globl %s\n.p2align 8\n.type %s,@function\n%s:\n" % (k, k, k) + kernel()
    out += '.section .rodata,"a"\n'
    out += ".p2align 6\n" + kd(k, 256)
    dst = [x for x in sys.argv[1:] if not x.startswith("--")]
    open(dst[0] if dst else "cdna_kernels/%s.s" % NAME, "w").write(out)


if __name__ == "__main__":
    main()
```

```python
import re

TRANS = ("v_exp_f32", "v_log_f32", "v_rcp_f32", "v_rsq_f32", "v_sqrt_f32", "v_sin_f32", "v_cos_f32",
         "v_rcp_iflag_f32")

_REG = re.compile(r"^(-|abs\()?([vsa])(\d+)\)?$")
_RNG = re.compile(r"^(-)?([vsa])\[(\d+):(\d+)\]$")


def regs_of(tok):
    tok = tok.strip()
    if tok in ("vcc",):
        return {("s", "vcc_lo"), ("s", "vcc_hi")}
    if tok in ("vcc_lo", "vcc_hi"):
        return {("s", tok)}
    if tok == "exec":
        return {("s", "exec_lo"), ("s", "exec_hi")}
    if tok in ("exec_lo", "exec_hi"):
        return {("s", tok)}
    if tok == "m0":
        return {("s", "m0")}
    m = _REG.match(tok)
    if m:
        return {(m.group(2), int(m.group(3)))}
    m = _RNG.match(tok)
    if m:
        return {(m.group(2), i) for i in range(int(m.group(3)), int(m.group(4)) + 1)}
    return set()


class Ins:
    __slots__ = ("text", "op", "kind", "w", "r", "ra", "rb", "rc", "passes", "label", "target", "uncond",
                 "states", "sdata", "is_dma", "dpp", "comment")

    def __init__(self, text):
        self.text = text
        self.label = None
        self.target = None
        self.uncond = False
        self.w = set()
        self.r = set()
        self.ra = set()
        self.rb = set()
        self.rc = set()
        self.sdata = set()
        self.passes = 0
        self.states = 1
        self.is_dma = False
        self.dpp = False
        self.kind = "other"
        self.op = ""
        self.parse()

    def parse(self):
        t = self.text.split(";")[0].strip()
        if not t:
            self.kind = "none"
            self.states = 0
            return
        if t.endswith(":"):
            self.kind = "label"
            self.label = t[:-1]
            self.states = 0
            return
        if t.startswith("."):
            self.kind = "none"
            self.states = 0
            return
        parts = t.split(None, 1)
        op = parts[0]
        self.op = op
        rest = parts[1] if len(parts) > 1 else ""
        ops = []
        if rest:
            depth = 0
            cur = ""
            for ch in rest:
                if ch == "[":
                    depth += 1
                elif ch == "]":
                    depth -= 1
                if ch == "," and depth == 0:
                    ops.append(cur.strip())
                    cur = ""
                else:
                    cur += ch
            ops.append(cur.strip())
        mods = []
        if ops:
            last = ops[-1].split()
            ops[-1] = last[0] if last else ""
            mods = last[1:]
        R = [regs_of(o) for o in ops]
        if op == "s_nop":
            self.kind = "salu"
            self.states = int(ops[0], 0) + 1
            return
        if op.startswith("s_cbranch") or op == "s_branch":
            self.kind = "branch"
            self.target = ops[0]
            self.uncond = op == "s_branch"
            return
        if op == "s_endpgm":
            self.kind = "end"
            self.uncond = True
            return
        if op.startswith("v_mfma"):
            self.kind = "mfma"
            self.w = R[0]
            self.ra, self.rb, self.rc = R[1], R[2], R[3]
            self.r = R[1] | R[2] | R[3]
            self.passes = 8 if "32x32" in op else 4
            return
        if op.startswith("ds_"):
            self.kind = "ds"
            if op.startswith("ds_read") or op.startswith("ds_bpermute") or op.startswith("ds_swizzle") \
                    or "_rtn" in op:
                self.w = R[0]
                for x in R[1:]:
                    self.r |= x
            else:
                for x in R:
                    self.r |= x
            return
        if op.startswith("buffer_") or op.startswith("global_"):
            self.kind = "vmem"
            if op in ("buffer_wbl2", "buffer_inv"):
                return
            lds = "lds" in mods or "_lds_" in op
            if lds:
                self.is_dma = True
                for x in R:
                    self.r |= x
                self.r |= {("s", "m0")}
            elif "_load" in op:
                self.w = R[0]
                for x in R[1:]:
                    self.r |= x
            elif "atomic" in op and "sc0" in mods:
                for x in R:
                    self.r |= x
                self.w = R[0]
            else:
                for x in R:
                    self.r |= x
                data = R[0] if op.startswith("buffer_") else R[1]
                if "x3" in op or "x4" in op:
                    self.sdata = data
            return
        if op.startswith("s_load") or op.startswith("s_buffer_load") or op.startswith("s_mem") \
                or op.startswith("s_atomic"):
            self.kind = "smem"
            self.w = R[0]
            for x in R[1:]:
                self.r |= x
            return
        if op.startswith("s_"):
            self.kind = "salu"
            if op.startswith("s_cmp") or op in ("s_waitcnt", "s_barrier", "s_setprio", "s_sleep", "s_bitcmp0_b32",
                                                "s_bitcmp1_b32"):
                for x in R:
                    self.r |= x
            else:
                if R:
                    self.w = R[0]
                for x in R[1:]:
                    self.r |= x
                if "saveexec" in op:
                    self.w |= regs_of("exec")
            return
        if op.startswith("v_"):
            self.kind = "valu"
            self.dpp = any(m.startswith(("row_", "quad_perm", "wave_")) for m in mods)
            if op.startswith("v_permlane") or op.startswith("v_swap"):
                self.w = R[0] | R[1]
                self.r = R[0] | R[1]
                return
            self.w = set(R[0])
            srcs = R[1:]
            if "_co_" in op or op.startswith("v_div_scale") or op.startswith("v_mad_u64"):
                self.w |= R[1]
                srcs = R[2:]
            for x in srcs:
                self.r |= x
            if op.startswith("v_cmpx"):
                self.w |= regs_of("exec")
            if op.startswith(("v_fmac", "v_mac", "v_writelane", "v_dot2c")):
                self.r |= R[0]
            return
        raise ValueError("cannot parse: " + self.text)


def vonly(s):
    return {x for x in s if x[0] in "va"}


def sonly(s):
    return {x for x in s if x[0] == "s"}


def need(p, c):
    n = 0
    pk, ck = p.kind, c.kind
    if pk == "valu":
        pv = vonly(p.w)
        ps = sonly(p.w)
        if ck == "mfma" and pv & c.r:
            n = max(n, 2)
        if ck == "valu":
            if pv & c.r:
                if c.op.startswith("v_permlane") or c.dpp:
                    n = max(n, 2)
                if c.op.startswith(("v_readlane", "v_readfirstlane")):
                    n = max(n, 1)
                if p.op.startswith(TRANS) and not c.op.startswith(TRANS):
                    n = max(n, 1)
                if "sdwa" in p.op or ("op_sel" in p.text and not p.op.startswith("v_pk_")):
                    n = max(n, 1)
            if ps & c.r:
                n = max(n, 4 if c.op.startswith(("v_readlane", "v_writelane", "v_div_fmas")) else 2)
            if ps & regs_of("exec"):
                n = max(n, 5 if c.dpp else 4 if c.op.startswith(("v_readlane", "v_readfirstlane", "v_permlane",
                                                                 "v_writelane")) else 0)
        if ck == "mfma" and ps & regs_of("exec"):
            n = max(n, 4)
        if ck == "vmem" and ps & c.r:
            n = max(n, 5)
        if ck in ("salu", "smem", "branch") and ps & c.r:
            n = max(n, 1)
        if ck in ("vmem", "ds") and p.op.startswith(TRANS) and pv & c.r:
            n = max(n, 1)
    if pk == "mfma":
        P = p.passes
        if ck == "mfma":
            if p.w & c.rc:
                if not (p.w == c.rc and P == c.passes):
                    n = max(n, P + 2)
            if p.w & (c.ra | c.rb):
                n = max(n, P + 4)
            if p.w & c.w and not (p.w & c.rc):
                n = max(n, P + 4)
        elif ck == "valu":
            if p.w & (c.r | c.w):
                n = max(n, P + 4)
            if p.rc & c.w:
                n = max(n, P - 1)
        elif ck in ("vmem", "ds"):
            if p.w & (c.r | c.w):
                n = max(n, P + 4)
            if p.rc & c.w:
                n = max(n, P - 1)
    if pk == "salu" and ("s", "m0") in p.w and c.is_dma:
        n = max(n, 1)
    if pk == "vmem" and p.sdata:
        if p.sdata & c.w:
            n = max(n, 2 if ck in ("valu", "mfma") else 1)
    return n


MAXLOOK = 14


class Asm:
    def __init__(self):
        self.lines = []

    def __call__(self, text):
        for ln in text.split("\n"):
            ln = ln.strip()
            if ln:
                self.lines.append(ln)

    def label(self, name):
        self.lines.append(name + ":")

    def finish(self):
        ins = [Ins(t) for t in self.lines]

        def build():
            pb = {}
            for i, x in enumerate(ins):
                if x.kind == "branch":
                    pb.setdefault(x.target, []).append(i)
            return pb

        def missing(i, preds_by_label):
            c = ins[i]
            worst = 0
            stack = [(i - 1, 0, False)]
            seen = set()
            while stack:
                j, d, via_branch = stack.pop()
                while j >= 0 and d < MAXLOOK:
                    if (j, d) in seen:
                        break
                    seen.add((j, d))
                    p = ins[j]
                    if p.uncond and not via_branch:
                        break
                    via_branch = False
                    if p.kind == "label":
                        for b in preds_by_label.get(p.label, []):
                            stack.append((b, d, True))
                        j -= 1
                        continue
                    if p.kind == "none":
                        j -= 1
                        continue
                    n = need(p, c)
                    if n - d > worst:
                        worst = n - d
                    d += p.states
                    j -= 1
            return worst

        for _ in range(3):
            changed = False
            pb = build()
            i = 0
            while i < len(ins):
                if ins[i].kind not in ("label", "none"):
                    w = missing(i, pb)
                    if w > 0:
                        ins.insert(i, Ins("s_nop %d" % (w - 1)))
                        pb = build()
                        changed = True
                        i += 1
                i += 1
            if not changed:
                break
        res = []
        for x in ins:
            if x.kind == "label":
                res.append(x.text)
            else:
                res.append("    " + x.text)
        return "\n".join(res) + "\n"


def _cost(x):
    if x.kind == "mfma":
        return 8
    if x.kind == "valu":
        if x.op.startswith(TRANS) or x.op.startswith("v_permlane"):
            return 8
        if x.op.startswith(("v_cvt_pk", "v_max3", "v_pk_fma", "v_cndmask", "v_bfi", "v_fma")):
            return 5
        return 4
    if x.kind == "vmem":
        return 8
    return 4


def schedule(lines, extra_deps=None, earliest=None, boost=None):
    ins = [Ins(t) for t in lines]
    n = len(ins)
    succ = [[] for _ in range(n)]
    npred = [0] * n
    wsucc = [[] for _ in range(n)]
    slot_at = [0] * n

    def lat(p, c, raw):
        base = _cost(p)
        ws = need(p, c)
        if p.kind == "mfma" and c.kind == "mfma" and p.w == c.rc and not (p.w & (c.ra | c.rb)):
            return 16
        return max(base, base + 4 * ws - (4 if p.kind == "mfma" and ws else 0))

    scc = ("s", "scc")
    for j in range(n):
        c = ins[j]
        for i in range(j):
            p = ins[i]
            raw = bool(p.w & c.r)
            dep = raw or bool(p.w & c.w) or bool(p.r & c.w)
            if p.kind in ("vmem", "ds") and c.kind == p.kind:
                dep = True
            if p.op in ("s_waitcnt", "s_barrier") and c.op in ("s_waitcnt", "s_barrier"):
                dep = True
            if dep:
                succ[i].append((j, lat(p, c, raw)))
                npred[j] += 1
                if need(p, c):
                    wsucc[i].append((j, need(p, c)))
    for (i, j) in (extra_deps or []):
        succ[i].append((j, _cost(ins[i])))
        npred[j] += 1
    prio = [0] * n
    for i in range(n - 1, -1, -1):
        prio[i] = _cost(ins[i]) + max([l + prio[j] - _cost(ins[i]) for j, l in succ[i]] + [0]) + (boost or {}).get(i, 0)
    ready_at = [(earliest or {}).get(i, 0) for i in range(n)]
    ready = [i for i in range(n) if npred[i] == 0]
    t = 0
    pipe_free = 0
    last_pk = -100
    order = []
    slot = 0
    while ready:
        def start(i):
            x = ins[i]
            s = max(t, ready_at[i], t + 4 * (slot_at[i] - slot))
            if x.kind == "mfma":
                s = max(s, pipe_free, last_pk + 16)
            if x.op.startswith("v_pk_"):
                s = max(s, pipe_free)
            return s
        best = min(ready, key=lambda i: (start(i) > t, 0 if (ins[i].kind == "mfma" and start(i) <= t) else 1,
                                         start(i) if start(i) > t else 0, -prio[i], i))
        s = start(best)
        x = ins[best]
        if x.kind == "mfma":
            pipe_free = s + 4 * x.passes
        if x.op.startswith("v_pk_"):
            last_pk = s
        t = s + _cost(x)
        order.append(best)
        slot = max(slot, slot_at[best]) + 1
        for j, wsn in wsucc[best]:
            slot_at[j] = max(slot_at[j], slot + wsn)
        ready.remove(best)
        for j, l in succ[best]:
            ready_at[j] = max(ready_at[j], s + l)
            npred[j] -= 1
            if npred[j] == 0:
                ready.append(j)
    assert len(order) == n
    return [lines[i] for i in order], t
```

```python
import sys
import os
sys.path.insert(0, os.path.dirname(os.path.abspath(__file__)))
from asmlib import Asm, Ins, schedule

NAME = "concat_heads__sliding_local_dilated__spectral_fnet__prompt"
OPT = set(x for x in sys.argv[1:] if x.startswith("--"))


def optint(name, default):
    x = [o[len(name) + 3:] for o in OPT if o.startswith("--%s=" % name)]
    return int(x[0]) if x else default


STAMP = "--stamp" in OPT
NOITER = "--iter" not in OPT
THR = optint("thr", 8)
SLEEP = optint("sleep", 1)
WSLEEP = optint("wsleep", 1)
INFO_AT = optint("info", 6)
PF = "--nopf" not in OPT
PFM = optint("pfm", 1)
GI = optint("gi", 8)
CROT = optint("crot", 0)
RELAY = "--norelay" not in OPT
RSLEEP = optint("rsleep", 3)
RPIPE = optint("rpipe", 4)
STOUCH = optint("stouch", 0)
BWAIT = optint("bwait", 0)
BTHR = optint("bthr", 4)
BROT = "--brot" in OPT
BLOOK = optint("blook", 12)
BPRIO = optint("bprio", 0)
TPOS = optint("tpos", 0)
KROT = "--nokrot" not in OPT
FORCE_SLOW = "--slow" in OPT

SLOT = 36864
MAT_LDS = 3 * SLOT + 32768
WS_LDS = 4 * SLOT
CTL = 65536
C_DONE, C_GGO, C_FGO, C_STAGED, C_TW, C_SIZES, C_OBASE = 8, 12, 16, 20, 24, 32, 40
LDS_BYTES = 163840
U_OFF = 2 << 20
U_ROW = 272 * 16
FLAG_OFF = 6 << 20
EARLY_OFF = FLAG_OFF + 64 * 256
RELAY_OFF = FLAG_OFF + 80 * 256
RELAY_IDX = 7
OF_OFF = 10 << 20
STAMP_OFF = 8 << 20
WS_REC = 16 << 20

S_X, S_W1, S_W2, S_WS, S_WO, S_TR, S_TI, S_DBG, S_OUT = 28, 32, 36, 40, 64, 76, 80, 84, 88
S_OF, S_OS, S_PF = 28, 32, 36
UOFFS = list(range(76, 84))


def v(i, n=1):
    return "v%d" % i if n == 1 else "v[%d:%d]" % (i, i + n - 1)


def sr(i):
    return "s[%d:%d]" % (i, i + 3)


def srd(a, d, base, nbytes):
    a("s_mov_b32 s%d, s%d" % (d, base))
    a("s_and_b32 s%d, s%d, 0xffff" % (d + 1, base + 1))
    a("s_mov_b32 s%d, 0x%x" % (d + 2, nbytes))
    a("s_mov_b32 s%d, 0x20000" % (d + 3))


def cv(d, x, y):
    return "v_cvt_pk_bf16_f32 v%d, %s, %s" % (d, x, y)


def mm32(d, x, y, c):
    return "v_mfma_f32_16x16x32_bf16 %s, %s, %s, %s" % (v(d, 4), v(x, 4), v(y, 4), v(d, 4) if c else "0")


def stamp(a, slot, clk=False):
    if not STAMP or (NOITER and isinstance(slot, str)):
        return
    for which, add in ((("s_memtime" if clk else "s_memrealtime"), 0), ("s_memtime", 32)):
        if add and (clk or "--dual" not in OPT):
            continue
        a("%s s[100:101]" % which)
        a("s_waitcnt lgkmcnt(0)")
        if isinstance(slot, str):
            a("s_mov_b32 s99, m0")
            a("s_add_u32 m0, %s, %d" % (slot, 12 + add))
            a("v_writelane_b32 v249, s100, m0")
            a("s_mov_b32 m0, s99")
        else:
            a("v_writelane_b32 v249, s100, %d" % (slot + add))


def stamp_init(a):
    if STAMP:
        a("v_mov_b32 v249, 0xa5a5a5a5")
        stamp(a, 30, clk=True)
        stamp(a, 29)


def stamp_flush(a):
    if not STAMP:
        return
    a("s_waitcnt vmcnt(0)")
    stamp(a, 31, clk=True)
    stamp(a, 28)
    a("s_lshl_b32 s92, s2, 3")
    a("s_add_u32 s92, s92, s3")
    a("s_lshl_b32 s92, s92, 7")
    a("s_add_u32 s92, s92, 0x%x" % STAMP_OFF)
    a("v_lshlrev_b32 v250, 2, v0")
    a("v_lshrrev_b32 v251, 5, v0")
    a("v_mul_u32_u24 v251, %d, v251" % (256 * 8 * 128 - 128))
    a("v_add_u32 v250, v250, v251")
    a("s_mov_b64 exec, -1")
    a("buffer_store_dword v249, v250, %s, s92 offen" % sr(S_WS))


def early_setup(a):
    srd(a, S_WS, 24, WS_REC)
    a("s_lshl_b32 s49, s26, 8")
    a("s_add_u32 s49, s49, 0x%x" % EARLY_OFF)
    a("v_and_b32 v24, 31, v0")
    a("v_lshl_add_u32 v24, v24, 2, s49")


def publish_die(a, tag):
    a("s_waitcnt lgkmcnt(0)")
    a("s_cmp_lg_u32 s95, 0")
    a("s_cbranch_scc1 L%s_tagok" % tag)
    srd(a, S_DBG, 22, 256)
    a("v_mov_b32 v25, 0")
    a("s_mov_b32 s49, 0")
    a.label("L%s_tag" % tag)
    a("buffer_load_dwordx2 v[22:23], v25, %s, 0 offen sc1" % sr(S_DBG))
    a("s_add_u32 s49, s49, 1")
    a("s_waitcnt vmcnt(0)")
    a("v_readfirstlane_b32 s94, v22")
    a("v_readfirstlane_b32 s95, v23")
    a("s_cmp_ge_u32 s49, 0x8000")
    a("s_cbranch_scc1 L%s_tagok" % tag)
    a("s_cmp_eq_u32 s95, 0")
    a("s_cbranch_scc1 L%s_tag" % tag)
    a.label("L%s_tagok" % tag)
    early_setup(a)
    a("s_getreg_b32 s96, hwreg(HW_REG_XCC_ID, 0, 4)")
    a("s_lshl_b32 s49, s94, 4")
    a("s_or_b32 s96, s96, s49")
    a("v_mov_b32 v23, s96")
    a("s_lshl_b64 exec, 1, s27")
    a("buffer_store_dword v23, v24, %s, 0 offen sc1" % sr(S_WS))
    a("s_mov_b64 exec, -1")


def ctl_init(a):
    a("v_mov_b32 v24, s94")
    a("v_mov_b32 v25, s95")
    for r in range(26, 30):
        a("v_mov_b32 v%d, 0" % r)
    a("ds_write_b128 v19, v[24:27]")
    a("ds_write_b128 v19, v[26:29] offset:16")


def verdict(a, tag, quick):
    if quick:
        a("s_mov_b32 s97, s96")
        a("s_xor_b64 s[56:57], s[60:61], s[96:97]")
        for k in range(1, 16):
            a("s_xor_b64 s[58:59], s[%d:%d], s[96:97]" % (60 + 2 * k, 61 + 2 * k))
            a("s_or_b64 s[56:57], s[56:57], s[58:59]")
        a("s_cmp_eq_u64 s[56:57], %s" % ("5" if FORCE_SLOW else "0"))
        a("s_cbranch_scc1 L%s_known" % tag)
    early_setup(a)
    a("s_mov_b32 s49, 0")
    a.label("L%s_info" % tag)
    a("buffer_load_dword v26, v24, %s, 0 offen sc1" % sr(S_WS))
    a("s_add_u32 s49, s49, 1")
    a("s_waitcnt vmcnt(0)")
    a("v_xor_b32 v26, s96, v26")
    a("v_cmp_gt_u32 vcc, 16, v26")
    a("s_cmp_ge_u32 s49, 0x8000")
    a("s_cbranch_scc1 L%s_infook" % tag)
    a("s_cmp_lg_u64 vcc, -1")
    a("s_cbranch_scc1 L%s_info" % tag)
    a.label("L%s_infook" % tag)
    a("v_cmp_eq_u32 vcc, 0, v26")
    a("s_cmp_eq_u64 vcc, %s" % ("5" if FORCE_SLOW else "-1"))
    a.label("L%s_known" % tag)
    a("s_cselect_b32 s56, 0x%x, 0" % WS_REC)
    a("s_cselect_b32 s57, 0, 0x%x" % WS_REC)
    a("s_cselect_b32 s58, 0x%x, 0" % OF_OFF)
    a("v_mov_b32 v28, s56")
    a("v_mov_b32 v29, s57")
    a("v_mov_b32 v30, s58")
    a("v_mov_b32 v31, 0")
    a("ds_write_b128 v19, v[28:31] offset:%d" % C_SIZES)


def loader_loop(a, tag, loads, nper, lead):
    a("s_branch L%s_issue" % tag)
    a.label("L%s_wait" % tag)
    a("s_waitcnt vmcnt(%d)" % nper)
    stamp(a, "s53")
    a("s_barrier")
    a.label("L%s_issue" % tag)
    a("s_add_u32 m0, s55, s52")
    for i, (vr, sd, so) in enumerate(loads):
        if i:
            a("s_add_u32 m0, m0, 4096")
        a("buffer_load_dwordx4 v%d, %s, s%d offen lds" % (vr, sr(sd), so))
    if not lead and not STOUCH:
        pass
    elif not lead:
        for k in range(8):
            a("s_load_dword s97, s[24:25], s58 offset:%d" % (64 * k))
        a("s_add_u32 s58, s58, 512")
    else:
        a("s_bitcmp1_b32 s59, s53")
        a("s_cbranch_scc0 L%s_nojob" % tag)
        a("s_cmp_lg_u32 s53, 2")
        a("s_cbranch_scc1 L%s_job2" % tag)
        a("s_load_dwordx2 s[94:95], s[22:23], 0")
        a("s_branch L%s_nojob" % tag)
        a.label("L%s_job2" % tag)
        a("s_cmp_lg_u32 s53, 3")
        a("s_cbranch_scc1 L%s_job3" % tag)
        publish_die(a, tag)
        a("s_branch L%s_nojob" % tag)
        a.label("L%s_job3" % tag)
        a("s_lshl_b32 s49, s26, 8")
        a("s_add_u32 s49, s49, 0x%x" % EARLY_OFF)
        a("s_load_dwordx16 s[60:75], s[24:25], s49")
        a("s_add_u32 s49, s49, 64")
        a("s_load_dwordx16 s[76:91], s[24:25], s49")
    a.label("L%s_nojob" % tag)
    a("s_add_u32 s50, s50, 128")
    a("s_add_u32 s51, s51, s54")
    a("s_add_u32 s53, s53, 1")
    a("s_and_b32 s55, s53, 3")
    a("s_mul_i32 s55, s55, %d" % SLOT)
    a("s_cmp_lt_u32 s53, 2")
    a("s_cbranch_scc1 L%s_issue" % tag)
    a("s_cmp_lt_u32 s53, 8")
    a("s_cbranch_scc1 L%s_wait" % tag)


def loader_scalars(a, wstep):
    a("s_mov_b32 s50, 0")
    a("s_mov_b32 s51, 0")
    a("s_lshl_b32 s52, s3, 10")
    a("s_mov_b32 s53, 0")
    a("s_mov_b32 s54, %d" % wstep)
    a("s_mov_b32 s55, 0")
    a("s_mov_b32 s59, 0x%x" % (4 | 8 | (1 << INFO_AT)))
    a("s_mul_i32 s58, s27, 3")
    a("s_add_u32 s58, s58, s3")
    a("s_mul_i32 s58, s58, 57 * 64")
    a("s_lshl_b32 s49, s26, 18")
    a("s_add_u32 s58, s58, s49")
    a("s_add_u32 s58, s58, 0x%x" % (OF_OFF - 25 * 57 * 64))


def interleave(mfmas, reads, per, extra=None, before=None):
    out = []
    k = 0
    for i, m in enumerate(mfmas):
        if before and i in before:
            out.extend(before[i])
        out.append(m)
        out.extend(reads[k:k + per[i]])
        k += per[i]
        if extra and i in extra:
            out.extend(extra[i])
    assert k >= len(reads)
    return out


def lane_xaddr(a, dst0, dst1, t0, t1):
    a("v_and_b32 v%d, 15, v0" % t0)
    a("v_lshrrev_b32 v%d, 4, v0" % t1)
    a("v_lshrrev_b32 v%d, 1, v%d" % (dst1, t0))
    a("v_xor_b32 v%d, v%d, v%d" % (dst1, dst1, t1))
    a("v_lshlrev_b32 v%d, 4, v%d" % (dst1, dst1))
    a("v_lshl_add_u32 v%d, v%d, 7, v%d" % (dst0, t0, dst1))
    a("v_xor_b32 v%d, 64, v%d" % (dst1, dst0))


def lane_traddr(a, dst, t0, t1, t2):
    a("v_and_b32 v%d, 15, v0" % t0)
    a("v_lshrrev_b32 v%d, 4, v0" % t1)
    a("v_lshrrev_b32 v%d, 2, v%d" % (t2, t0))
    a("v_lshl_add_u32 v%d, v%d, 3, v%d" % (dst, t1, t2))
    a("v_lshlrev_b32 v%d, 7, v%d" % (dst, dst))
    a("v_and_b32 v%d, 3, v%d" % (t2, t0))
    a("v_lshl_add_u32 v%d, v%d, 3, v%d" % (dst, t2, dst))
    a("v_lshrrev_b32 v%d, 3, v%d" % (t2, t0))
    a("v_and_b32 v%d, 1, v%d" % (t1, t1))
    a("v_lshl_add_u32 v%d, v%d, 1, v%d" % (t2, t1, t2))
    a("v_lshl_add_u32 v%d, v%d, 5, v%d" % (dst, t2, dst))


def consumer_side_jobs(a, tag, x_job, w3_job):
    a("v_lshlrev_b32 v24, 10, v0")
    a("s_mov_b32 s67, 0")
    a("s_cmp_eq_u32 s48, 1")
    a("s_cbranch_scc1 L%s_j1" % tag)
    a("s_cmp_eq_u32 s48, 2")
    a("s_cbranch_scc1 L%s_j2" % tag)
    a("s_cmp_eq_u32 s48, 3")
    a("s_cbranch_scc1 L%s_j3" % tag)
    srd(a, S_PF, 6, 512 * 3072)
    a("s_mul_i32 s64, s27, 48 * 1024")
    a("s_mov_b32 s66, -1")
    a("s_mov_b32 s67, 0xffff")
    a("s_branch L%s_jd" % tag)
    a.label("L%s_j1" % tag)
    x_job()
    a("s_branch L%s_jd" % tag)
    a.label("L%s_j3" % tag)
    w3_job()
    a("s_branch L%s_jd" % tag)
    a.label("L%s_j2" % tag)
    if "--touch" in OPT:
        srd(a, S_PF, 24, WS_REC)
        a("s_lshl_b32 s64, s26, 5")
        a("s_add_u32 s64, s64, s27")
        a("s_lshl_b32 s64, s64, 13")
        a("v_lshlrev_b32 v24, 7, v0")
        a("v_subrev_u32 v24, 384, v24")
        a("v_and_b32 v24, 0x1fff, v24")
        a("v_cmp_gt_u32 vcc, 3, v0")
        a("v_subrev_u32 v25, 0x2000, v24")
        a("v_cndmask_b32 v24, v24, v25, vcc")
        a("v_add_u32 v24, s64, v24")
        a("v_max_i32 v24, 0, v24")
        a("s_mov_b32 s64, 0")
        a("s_mov_b64 s[66:67], -1")
    else:
        srd(a, S_PF, 8, 512 * 1024)
        a("s_lshl_b32 s64, s27, 14")
        a("s_mov_b32 s66, 0xffff")
    a.label("L%s_jd" % tag)


def main_loop(a, tag, mf, rd, addr_regs, first_wait, bar, nst):
    n = len(mf(0))
    a("s_mov_b32 s60, 0")
    a("s_mov_b32 s62, %d" % SLOT)
    a("s_mov_b32 s63, %d" % (-3 * SLOT))
    stamp(a, 0)
    a("s_barrier")
    stamp(a, 1)
    stamp(a, 26, clk=True)
    for r in rd(0, 0):
        a(r)
    if PF:
        if PFM != 15:
            a("s_lshr_b32 s49, %d, s48" % PFM)
            a("s_bitcmp1_b32 s49, 0")
            a("s_cbranch_scc0 L%s_loop" % tag)
        a("s_mov_b64 exec, s[66:67]")
        a("buffer_load_dword v248, v24, %s, s64 offen offset:384" % sr(S_PF))
        a("s_mov_b64 exec, -1")
    a.label("L%s_loop" % tag)
    a("s_waitcnt lgkmcnt(%d)" % first_wait)
    extra = {0: ["s_add_u32 s60, s60, 1", "s_and_b32 s61, s60, 3"],
             1: ["s_cmp_eq_u32 s61, 0", "s_cselect_b32 s61, s63, s62"]}
    for ln in interleave(mf(0), rd(1, 1), [0, 0, 2, 2, 2] + [1] * n, extra, {2: ["s_waitcnt lgkmcnt(0)"]}):
        a(ln)
    a("s_waitcnt lgkmcnt(0)")
    extra = {0: ["v_add_u32 v%d, s61, v%d" % (r, r) for r in addr_regs[:2]],
             1: ["v_add_u32 v%d, s61, v%d" % (r, r) for r in addr_regs[2:]],
             2: ["s_cmp_lt_u32 s60, %d" % (nst - 1)],
             bar - 1: ["s_barrier"]}
    for ln in interleave(mf(1), rd(0, 0), [0] * bar + [2] * n, extra):
        a(ln)
    if STAMP and not NOITER:
        stamp(a, "s60")
        a("s_cmp_lt_u32 s60, %d" % (nst - 1))
    a("s_cbranch_scc1 L%s_loop" % tag)
    stamp(a, 27, clk=True)
    stamp(a, 2)


def tail_region(a, mf, reads, body, name):
    a("s_waitcnt lgkmcnt(0)")
    lines = list(reads) + ["s_waitcnt lgkmcnt(0)"] + mf(0) + mf(1) + body
    w = len(reads)
    dst = set()
    for r in reads:
        dst |= Ins(r).w
    deps = [(i, w) for i in range(w)]
    deps += [(w, j) for j in range(w + 1, len(lines)) if Ins(lines[j]).r & dst]
    order, t = schedule(lines, deps, {w: 220}, {i: 5000 for i in range(w)})
    sys.stderr.write("%s tail region: %d instructions, model %d cycles\n" % (name, len(order), t))
    for ln in order:
        a(ln)


def watch(a, tag, word, value):
    a("s_mov_b32 s49, 0")
    a.label("L%s_watch" % tag)
    a("ds_read_b32 v20, v19 offset:%d" % word)
    a("s_add_u32 s49, s49, 1")
    a("s_waitcnt lgkmcnt(0)")
    a("v_readfirstlane_b32 s51, v20")
    a("s_cmp_ge_u32 s51, %d" % value)
    a("s_cbranch_scc1 L%s_seen" % tag)
    if WSLEEP:
        a("s_sleep %d" % WSLEEP)
    a("s_cmp_lt_u32 s49, 0x80000")
    a("s_cbranch_scc1 L%s_watch" % tag)
    a.label("L%s_seen" % tag)


def wait_flags(a, tag, lead, mask, word):
    a("s_cmp_lg_u32 s3, %d" % lead)
    a("s_cbranch_scc1 L%s_follow" % tag)
    a("s_mov_b32 s49, 0")
    a("s_mov_b64 exec, %s" % mask)
    a.label("L%s_poll" % tag)
    a("buffer_load_dwordx2 v[20:21], v18, %s, 0 offen sc1" % sr(S_WS))
    a("s_add_u32 s49, s49, 1")
    a("s_waitcnt vmcnt(0)")
    a("v_cmp_eq_u64 vcc, s[94:95], v[20:21]")
    a("s_cmp_eq_u64 vcc, exec")
    a("s_cbranch_scc1 L%s_pdone" % tag)
    if SLEEP:
        a("s_sleep %d" % SLEEP)
    a("s_cmp_lt_u32 s49, 0x8000")
    a("s_cbranch_scc1 L%s_poll" % tag)
    a.label("L%s_pdone" % tag)
    a("s_mov_b64 exec, -1")
    a("ds_write_b32 v19, v19 offset:%d" % word)
    a("s_branch L%s_seen" % tag)
    a.label("L%s_follow" % tag)
    watch(a, tag, word, 1)


def out_tiles(a, acc, tmp, stores):
    for t in range(4):
        a(cv(tmp + 2 * t, v(acc + 4 * t), v(acc + 4 * t + 1)))
        a(cv(tmp + 2 * t + 1, v(acc + 4 * t + 2), v(acc + 4 * t + 3)))
    for p in range(2):
        a("v_permlane16_swap_b32 v%d, v%d" % (tmp + 4 * p, tmp + 4 * p + 2))
        a("v_permlane16_swap_b32 v%d, v%d" % (tmp + 4 * p + 1, tmp + 4 * p + 3))
        a("buffer_store_dwordx4 %s, v%d, %s, 0 offen offset:%d" % (v(tmp + 4 * p, 4), stores[p][0], sr(S_OUT), stores[p][1]))


def kernel():
    a = Asm()
    a("s_cmp_ge_u32 s2, 256")
    a("s_cbranch_scc1 L_end")
    stamp_init(a)
    a("s_load_dwordx16 s[4:19], s[0:1], 0")
    a("s_load_dwordx4 s[20:23], s[0:1], 64")
    a("s_load_dwordx2 s[24:25], s[0:1], 80")
    a("v_lshrrev_b32 v1, 6, v0")
    a("v_and_b32 v0, 63, v0")
    a("v_readfirstlane_b32 s3, v1")
    a("s_and_b32 s26, s2, 7")
    a("s_lshr_b32 s27, s2, 3")
    a("v_lshrrev_b32 v1, 3, v0")
    a("v_and_b32 v2, 7, v0")
    a("v_lshrrev_b32 v3, 1, v1")
    a("s_cmp_lt_u32 s27, 8")
    a("s_cbranch_scc1 L_B")
    a("s_and_b32 s44, s27, 7")
    a("s_lshr_b32 s45, s27, 3")
    a("s_sub_u32 s45, s45, 1")
    a("s_lshr_b32 s46, s26, 2")
    a("s_and_b32 s47, s26, 3")
    a("s_lshl_b32 s47, s47, 8")
    a("s_mul_i32 s49, s45, 88")
    a("s_add_u32 s47, s47, s49")
    a("s_sub_u32 s47, s47, 16")
    a("s_max_i32 s47, s47, 0")
    a("s_cmp_ge_u32 s3, 4")
    a("s_cbranch_scc1 L_Acons")
    a("s_and_b32 s48, s3, 1")
    a("s_lshl_b32 s49, s48, 2")
    a("v_or_b32 v4, s49, v3")
    a("v_xor_b32 v4, v4, v2")
    a("v_lshlrev_b32 v4, 4, v4")
    a("v_lshl_add_u32 v4, v1, 11, v4")
    a("s_lshl_b32 s49, s3, 3")
    a("s_add_u32 s49, s49, s47")
    a("s_lshl_b32 s49, s49, 1")
    a("s_add_u32 s49, s49, s46")
    a("s_lshl_b32 s49, s49, 10")
    a("v_add_u32 v10, s49, v4")
    a("v_add_u32 v11, 0x10000, v10")
    a("v_add_u32 v12, 0x20000, v10")
    a("v_and_b32 v5, 1, v3")
    a("s_lshl_b32 s49, s48, 1")
    a("v_or_b32 v5, s49, v5")
    a("v_lshlrev_b32 v5, 1, v5")
    a("v_xor_b32 v5, v5, v2")
    a("v_lshlrev_b32 v5, 4, v5")
    a("s_lshl_b32 s49, s3, 3")
    a("v_add_u32 v6, s49, v1")
    a("v_mul_u32_u24 v6, 3072, v6")
    a("s_lshl_b32 s49, s44, 7")
    a("v_add3_u32 v13, v6, v5, s49")
    for i in range(1, 6):
        a("v_add_u32 v%d, 0x%x, v13" % (13 + i, (i & 1) * 32 * 3072 + (i >> 1) * 1024))
    loader_scalars(a, 64 * 3072)
    a("s_waitcnt lgkmcnt(0)")
    srd(a, S_X, 4, 2048 * 1024)
    srd(a, S_W1, 6, 512 * 3072)
    stamp(a, 0)
    lds_loads = [(10 + i, S_X, 50) for i in range(3)] + [(13 + i, S_W1, 51) for i in range(6)]
    a("s_cmp_eq_u32 s3, 0")
    a("s_cbranch_scc1 L_lead")
    loader_loop(a, "LA", lds_loads, 9, False)
    a("v_mov_b32 v19, %d" % CTL)
    a("s_waitcnt vmcnt(9)")
    a("s_barrier")
    a("s_branch L_tail")
    a.label("L_lead")
    loader_loop(a, "LL", lds_loads, 9, True)
    a("v_mov_b32 v19, %d" % CTL)
    a("s_waitcnt vmcnt(9)")
    a("s_barrier")
    a("s_waitcnt lgkmcnt(0)")
    ctl_init(a)
    verdict(a, "VA", True)
    a("s_waitcnt lgkmcnt(0)")
    a("s_branch L_tail")

    a.label("L_B")
    a("s_lshl_b32 s45, s26, 1")
    a("s_and_b32 s46, s27, 1")
    a("s_add_u32 s45, s45, s46")
    a("s_lshr_b32 s44, s27, 1")
    a("s_cmp_ge_u32 s3, 4")
    a("s_cbranch_scc1 L_Bcons")
    a("s_and_b32 s48, s3, 1")
    a("s_lshl_b32 s49, s48, 2")
    a("v_or_b32 v4, s49, v3")
    a("v_xor_b32 v4, v4, v2")
    a("v_lshlrev_b32 v4, 4, v4")
    a("s_lshl_b32 s49, s3, 3")
    a("v_add_u32 v5, s49, v1")
    a("v_lshl_add_u32 v10, v5, 16, v4")
    a("s_lshl_b32 s49, s45, 12")
    a("v_add_u32 v10, s49, v10")
    a("v_lshl_add_u32 v14, v5, 11, v4")
    a("s_lshr_b32 s49, s44, 1")
    a("s_lshl_b32 s49, s49, 7")
    a("s_and_b32 s47, s44, 1")
    a("s_add_u32 s49, s49, s47")
    a("s_lshl_b32 s49, s49, 10")
    a("v_add_u32 v14, s49, v14")
    a("v_add_u32 v15, 0x10000, v14")
    a("s_lshl_b32 s52, s3, 10")
    a("s_add_u32 s49, s44, s3")
    a("s_cmp_eq_u32 s49, 0")
    a("s_cselect_b32 s56, 0xffffff00, -1")
    a("s_mov_b32 s57, -1")
    if BROT:
        a("s_lshl_b32 s49, s46, 1")
        a("s_add_u32 s49, s49, s44")
        a("s_lshl_b32 s49, s49, 7")
    else:
        a("s_mov_b32 s49, 0")
    for st in range(4):
        a("s_add_u32 s%d, s49, %d" % (60 + st, 128 * st))
        a("s_and_b32 s%d, s%d, 0x180" % (60 + st, 60 + st))
    a("s_waitcnt lgkmcnt(0)")
    srd(a, S_X, 10, 2048 * 1024)
    srd(a, S_W1, 16, 512 * 1024)
    srd(a, S_W2, 18, 512 * 1024)
    stamp(a, 0)
    XR = 32
    pend = []

    def op_list(st):
        ops = []
        for i in range(4):
            for hi in range(2):
                ops.append((("x", st, i), ["buffer_load_dwordx4 %s, v10, %s, s%d offen offset:%d" %
                                           (v(XR + 32 * st + 8 * i + 4 * hi, 4), sr(S_X), 60 + st, 1024 * i + 512 * hi)]))
            j = i
            ln = ["s_add_u32 m0, s52, %d" % (st * SLOT + 16384 + 4096 * j)]
            if j == 2:
                ln.append("s_mov_b64 exec, s[56:57]")
            ln.append("buffer_load_dwordx4 v%d, %s, s%d offen lds" % (14 + (j & 1), sr(S_W2 if j >> 1 else S_W1), 60 + st))
            if j == 2:
                ln.append("s_mov_b64 exec, -1")
            ops.append((("w", st), ln))
        return ops

    allops = op_list(0) + op_list(1) + op_list(2) + op_list(3)

    def issue(ops):
        for tg, ln in ops:
            for x in ln:
                a(x)
            pend.append(tg)

    def wait_for(tg, extra=""):
        last = max(i for i, t in enumerate(pend) if t == tg)
        a("s_waitcnt vmcnt(%d)%s" % (len(pend) - 1 - last, extra))

    issue(allops[:BLOOK])
    if BPRIO:
        a("s_setprio %d" % BPRIO)
    a("s_lshl_b32 s47, s47, 31")
    a("s_or_b32 s47, s47, 0x3f800000")
    a("s_mov_b32 s51, 0xffff0000")
    a("v_lshl_add_u32 v11, v0, 4, s52")
    a("v_add_u32 v12, %d, v11" % (2 * SLOT))
    a("v_mov_b32 v19, %d" % CTL)
    a("s_cmp_eq_u32 s56, -1")
    a("s_cbranch_scc1 L_nofill")
    a("v_and_b32 v6, 3, v1")
    a("v_mul_u32_u24 v6, %d, v6" % SLOT)
    a("v_lshl_add_u32 v6, v2, 4, v6")
    for r in range(4):
        a("v_mov_b32 v%d, 0xbf803f80" % (28 + r))
    a("ds_write_b128 v6, v[28:31] offset:24576")
    a.label("L_nofill")
    for st in range(4):
        if st == 3:
            a("v_lshrrev_b32 v6, 2, v0")
            a("v_lshlrev_b32 v6, 14, v6")
            a("v_and_b32 v7, 3, v0")
            a("v_lshl_add_u32 v6, v7, 4, v6")
            a("s_lshl_b32 s49, s48, 18")
            a("s_add_u32 m0, s52, %d" % MAT_LDS)
            a("s_cmp_ge_u32 s3, 2")
            a("s_cbranch_scc1 L_mat_im")
            a("buffer_load_dwordx4 v6, %s, s49 offen lds" % sr(S_W1))
            a("s_branch L_mat_done")
            a.label("L_mat_im")
            a("buffer_load_dwordx4 v6, %s, s49 offen lds" % sr(S_W2))
            a.label("L_mat_done")
            pend.append(("w", 3))
        for i in range(4):
            wait_for(("x", st, i))
            k = BLOOK + 3 * (4 * st + i)
            issue(allops[k:k + 3])
            lo, hi, o = XR + 32 * st + 8 * i, XR + 32 * st + 8 * i + 4, 160 + 4 * i
            for r in range(4):
                a("v_lshlrev_b32 v%d, 16, v%d" % (176 + r, lo + r))
                a("v_lshlrev_b32 v%d, 16, v%d" % (180 + r, hi + r))
                a("v_and_b32 v%d, s51, v%d" % (lo + r, lo + r))
                a("v_and_b32 v%d, s51, v%d" % (hi + r, hi + r))
            for r in range(4):
                a("v_fmac_f32 v%d, s47, v%d" % (176 + r, 180 + r))
                a("v_fmac_f32 v%d, s47, v%d" % (lo + r, hi + r))
            for r in range(4):
                a(cv(o + r, v(176 + r), v(lo + r)))
            a("ds_write_b128 v%d, %s offset:%d" % (11 + (st >> 1), v(o, 4), (st & 1) * SLOT + 4096 * i))
        wait_for(("w", st), " lgkmcnt(0)")
        a("s_barrier")
        if st < 3:
            a("s_cmp_lg_u32 s3, 0")
            a("s_cbranch_scc1 L_bjob%d" % st)
            if st == 0:
                a("s_load_dwordx2 s[94:95], s[22:23], 0")
            elif st == 1:
                publish_die(a, "LB")
            else:
                ctl_init(a)
            a.label("L_bjob%d" % st)
    if BPRIO:
        a("s_setprio 0")
    if BWAIT:
        watch(a, "Bw", C_DONE, BWAIT)
    a("s_cmp_lg_u32 s3, 0")
    a("s_cbranch_scc1 L_tail")
    verdict(a, "VB", False)

    a.label("L_tail")
    a("s_lshl_b32 s68, s26, 2")
    a("s_and_b32 s69, s27, 3")
    a("s_add_u32 s68, s68, s69")
    a("s_lshr_b32 s69, s27, 2")
    srd(a, S_WO, 8, 512 * 1024)
    a("v_and_b32 v8, 1, v3")
    a("s_lshl_b32 s49, s48, 1")
    a("v_or_b32 v8, s49, v8")
    a("v_lshlrev_b32 v8, 1, v8")
    a("v_xor_b32 v8, v8, v2")
    a("v_lshlrev_b32 v8, 4, v8")
    a("s_lshl_b32 s49, s3, 3")
    a("v_add_u32 v9, s49, v1")
    a("v_lshl_add_u32 v20, v9, 10, v8")
    a("s_lshl_b32 s50, s69, 7")
    a("v_add_u32 v20, s50, v20")
    if KROT:
        a("s_lshl_b32 s93, s69, 1")
        a("s_lshl_b32 s49, s68, 2")
        a("s_add_u32 s93, s93, s49")
        a("s_and_b32 s93, s93, 15")
    else:
        a("s_mov_b32 s93, 0")
    a("s_mov_b32 m0, s52")
    a("s_lshl_b32 s54, s93, 15")
    NB7 = 2
    srd(a, S_WS, 24, WS_REC)

    def touch():
        if STOUCH:
            return
        a("s_lshl_b32 s49, s26, 5")
        a("s_add_u32 s49, s49, s27")
        a("s_lshl_b32 s49, s49, 2")
        a("s_add_u32 s49, s49, s3")
        a("s_lshl_b32 s49, s49, 11")
        a("s_add_u32 s49, s49, 0x%x" % OF_OFF)
        a("v_lshlrev_b32 v21, 7, v0")
        a("s_mov_b64 exec, 0xffff")
        a("buffer_load_dword v248, v21, %s, s49 offen" % sr(S_WS))
        a("s_mov_b64 exec, -1")

    for i in range(16):
        if i == TPOS:
            touch()
        if i:
            a("s_add_u32 m0, m0, 4096")
            a("s_add_u32 s54, s54, 0x8000")
            a("s_and_b32 s54, s54, 0x7ffff")
            a("s_cmp_lt_u32 s27, 8")
        a("buffer_load_dwordx4 v20, %s, s54 offen lds" % sr(S_WO))
        if i == NB7 - 1:
            a("s_cmp_lt_u32 s27, 8")
            a("s_cbranch_scc1 L_no7")
            a("s_waitcnt vmcnt(%d)" % (NB7 + (1 if TPOS < NB7 and not STOUCH else 0)))
            a("s_barrier")
            a.label("L_no7")
        else:
            if i >= BTHR and BTHR < THR:
                a("s_cbranch_scc0 L_thr%d" % i)
                a("s_waitcnt vmcnt(%d)" % BTHR)
                a.label("L_thr%d" % i)
            if i >= THR:
                a("s_waitcnt vmcnt(%d)" % THR)
    if TPOS == 16:
        touch()
    srd(a, S_TR, 12, 2048 * 4096)
    srd(a, S_TI, 14, 2048 * 4096)
    a("s_lshl_b32 s49, s48, 2")
    a("v_or_b32 v8, s49, v3")
    a("v_xor_b32 v8, v8, v2")
    a("v_lshlrev_b32 v8, 4, v8")
    a("v_lshl_add_u32 v21, v9, 17, v8")
    a("s_lshl_b32 s49, s68, 12")
    a("v_add_u32 v21, s49, v21")
    a("s_mov_b32 s54, 0x%x" % (32 * 32 * 4096))
    a("s_add_u32 m0, s52, %d" % WS_LDS)
    for i in range(4):
        if i:
            a("s_add_u32 m0, m0, 4096")
        a("buffer_load_dwordx4 v21, %s, %s offen lds" % (sr(S_TI if i >> 1 else S_TR), "s54" if i & 1 else "0"))
        a("s_waitcnt vmcnt(%d)" % THR)
    srd(a, S_OUT, 20, 2048 * 2048)
    a("v_and_b32 v1, 15, v0")
    a("v_lshrrev_b32 v2, 4, v0")
    a("v_and_b32 v3, 1, v2")
    a("v_lshrrev_b32 v4, 1, v2")
    a("s_lshl_b32 s49, s68, 2")
    a("s_add_u32 s49, s49, s3")
    a("s_lshl_b32 s49, s49, 4")
    a("v_add_u32 v5, s49, v1")
    a("s_lshl_b32 s49, s68, 16")
    a("v_lshl_add_u32 v6, v2, 10, s49")
    a("v_and_b32 v7, 63, v5")
    a("v_lshl_add_u32 v6, v7, 4, v6")
    a("v_and_b32 v7, 1023, v5")
    a("v_lshrrev_b32 v8, 10, v5")
    a("v_lshl_add_u32 v7, v7, 1, v8")
    a("v_lshlrev_b32 v3, 5, v3")
    a("v_lshl_add_u32 v3, v4, 4, v3")
    a("v_add_u32 v3, s50, v3")
    a("v_lshl_add_u32 v13, v7, 11, v3")
    lane_traddr(a, 14, 8, 9, 10)
    for t in range(1, 4):
        a("v_xor_b32 v%d, %d, v14" % (14 + t, 32 * t))
    a("s_and_b32 s49, s27, 3")
    a("s_min_u32 s59, s49, 2")
    a("s_max_u32 s58, s49, 1")
    a("s_sub_u32 s58, s58, 1")
    a("s_mul_i32 s49, s26, 3")
    a("s_add_u32 s49, s49, %d" % (FLAG_OFF >> 8))
    for k in range(2):
        a("s_add_u32 s%d, s%d, s49" % (58 + k, 58 + k))
        a("s_lshl_b32 s%d, s%d, 8" % (58 + k, 58 + k))
    a("v_mov_b32 v18, s59")
    a("v_mov_b32 v12, s58")
    a("v_cmp_gt_u32 vcc, 8, v0")
    a("v_cndmask_b32 v18, v18, v12, vcc")
    a("v_and_b32 v12, 7, v0")
    a("v_lshl_add_u32 v18, v12, 3, v18")
    a("v_mov_b32 v22, 1")
    a("s_waitcnt vmcnt(%d)" % (5 if TPOS == 16 and not STOUCH else 4))
    stamp(a, 4)
    a("s_mov_b64 exec, 1")
    a("ds_add_u32 v19, v22 offset:%d" % C_STAGED)
    a("s_mov_b64 exec, -1")
    watch(a, "Gs", C_STAGED, 4)
    stamp(a, 5)
    a("ds_read_b32 v23, v19 offset:%d" % C_OBASE)
    OF, ACC, WF = 24, 88, 104
    NPRE = 9

    def rd(ks):
        return ["ds_read_b64_tr_b16 %s, v%d offset:%d" % (v(WF + 16 * (ks % NPRE) + 4 * t + 2 * hh, 2), 14 + t,
                                                          ks * 4096 + hh * 512) for t in range(4) for hh in range(2)]

    for ks in range(NPRE):
        for x in rd(ks):
            a(x)
    a("s_waitcnt vmcnt(0)")
    a("s_mov_b64 exec, 1")
    a("ds_add_u32 v19, v22 offset:%d" % C_TW)
    a("s_mov_b64 exec, -1")
    a("s_waitcnt lgkmcnt(0)")
    a("v_add_u32 v6, v23, v6")
    stamp(a, 6)
    wait_flags(a, "G", 0, "0xffff", C_GGO)
    a("s_setprio 2")
    stamp(a, 7)
    a("s_lshl_b32 s54, s93, 12")

    def oload(c):
        if c:
            a("s_add_u32 s54, s54, 0x1000")
            a("s_and_b32 s54, s54, 0xffff")
        a("buffer_load_dwordx4 %s, v6, %s, s54 offen sc1" % (v(OF + 4 * c, 4), sr(S_WS)))

    for c in range(GI):
        oload(c)
    for ks in range(16):
        issued = min(16, GI + ks)
        if ks < NPRE:
            a("s_waitcnt vmcnt(%d)" % (issued - 1 - ks))
        else:
            a("s_waitcnt vmcnt(%d) lgkmcnt(%d)" % (issued - 1 - ks, min(15, 8 * (15 - ks))))
        if ks == 0:
            stamp(a, 8)
        rr = rd(ks + NPRE) if ks + NPRE < 16 else []
        for t in range(4):
            a(mm32(ACC + 4 * t, WF + 16 * (ks % NPRE) + 4 * t, OF + 4 * ks, ks))
            if t == 0 and GI + ks < 16:
                oload(GI + ks)
            for x in rr[2 * t:2 * t + 2]:
                a(x)
    stamp(a, 9)
    out_tiles(a, ACC, 24, [(13, 0), (13, 64)])
    stamp(a, 10)
    stamp_flush(a)
    a("s_endpgm")

    a.label("L_Acons")
    a("s_setprio 1")
    a("s_sub_u32 s48, s3, 4")
    Q, K, V = 32, 56, 80
    X = [104, 140]
    W = [128, 164]
    lane_xaddr(a, 4, 5, 1, 2)
    lane_traddr(a, 6, 1, 2, 3)
    a("s_lshl_b32 s49, s48, 5")
    a("v_xor_b32 v6, s49, v6")
    for r in range(32, 104):
        a("v_mov_b32 v%d, 0" % r)
    a("s_waitcnt lgkmcnt(0)")

    def xjobA():
        srd(a, S_PF, 4, 2048 * 1024)
        a("s_mul_i32 s64, s44, 12")
        a("s_add_u32 s64, s64, s47")
        a("s_lshl_b32 s64, s64, 1")
        a("s_add_u32 s64, s64, s46")
        a("s_lshl_b32 s64, s64, 10")
        a("v_lshlrev_b32 v24, 11, v0")
        a("s_mov_b32 s66, 0xfff")

    def w3jobA():
        srd(a, S_PF, 4, 0)
        a("s_mov_b32 s64, 0")
        a("s_mov_b32 s66, 1")

    consumer_side_jobs(a, "A", xjobA, w3jobA)
    a("v_and_b32 v1, 15, v0")
    a("v_lshrrev_b32 v2, 4, v0")
    a("v_lshlrev_b32 v3, 2, v2")
    a("v_sub_u32 v3, v1, v3")
    a("v_mov_b32 v7, 0xf149f2ca")
    a("v_mov_b32 v16, 0")
    a("v_mov_b32 v17, 0")
    a("s_mov_b32 s56, 0xffff")
    a("s_mov_b32 s57, 0xffff0000")
    for r in range(4):
        a("v_subrev_u32 v22, %d, v3" % r)
        a("v_cmp_gt_u32 vcc, 8, v22")
        a("v_mov_b32 v25, s%d" % (56 + (r & 1)))
        a("v_add_u32 v22, 16, v22")
        a("v_cndmask_b32 v%d, v7, v32, vcc" % (8 + r))
        a("v_cndmask_b32 v25, v32, v25, vcc")
        a("v_cmp_gt_u32 vcc, 8, v22")
        a("v_or_b32 v%d, v%d, v25" % (16 + (r >> 1), 16 + (r >> 1)))
        a("v_cndmask_b32 v%d, v7, v32, vcc" % (12 + r))
    a("v_not_b32 v18, v16")
    a("v_not_b32 v19, v17")
    a("v_mov_b32 v20, 0x3f803f80")
    a("v_mov_b32 v21, 0x3f803f80")
    a("s_lshl_b32 s49, s46, 10")
    a("s_add_u32 s49, s49, s47")
    a("v_and_b32 v22, 31, v0")
    a("v_add_u32 v28, s49, v22")
    a("s_lshl_b32 s49, s44, 2")
    a("s_add_u32 s49, s49, s48")
    a("s_lshl_b32 s49, s49, 11")
    a("v_lshrrev_b32 v23, 5, v0")
    a("v_lshl_add_u32 v29, v23, 10, s49")
    for p, d in enumerate((27, 26, 25)):
        if p:
            a("v_add_u32 v28, 32, v28")
        a("v_lshrrev_b32 v23, 6, v28")
        a("v_lshl_add_u32 v%d, v23, 16, v29" % d)
        a("v_and_b32 v23, 63, v28")
        a("v_lshl_add_u32 v%d, v23, 4, v%d" % (d, d))
    a("s_cmp_eq_u32 s45, 0")
    a("s_cselect_b32 s49, 16, 8")
    a("s_cmp_eq_u32 s47, 0")
    a("s_cselect_b32 s49, 0, s49")
    a("s_cselect_b32 s51, 16, 32")
    a("v_mov_b32 v23, 0x80000000")
    a("v_cmp_gt_u32 vcc, s49, v22")
    a("v_cndmask_b32 v27, v27, v23, vcc")
    a("v_cmp_gt_u32 vcc, s51, v22")
    a("v_cndmask_b32 v25, v23, v25, vcc")
    a("v_mov_b32 v7, %d" % CTL)
    srd(a, S_WS, 24, WS_REC)
    srd(a, S_OF, 24, 0)
    srd(a, S_OS, 24, 0)
    a("s_mul_i32 s73, s26, 3")
    a("s_add_u32 s73, s73, s45")
    a("s_lshl_b32 s73, s73, 8")
    a("s_lshl_b32 s74, s44, 3")
    a("s_add_u32 s73, s73, s74")
    a("s_mov_b32 s74, 1")
    a("s_mov_b32 s56, 0x3eb8aa3b")
    a("s_mov_b32 s57, 0x3eb8aa3b")
    a("s_mov_b32 s58, 0x%x" % OF_OFF)

    def readsA(st, kk):
        r = []
        for t in range(3):
            for hh in range(2):
                r.append("ds_read_b64_tr_b16 %s, v6 offset:%d" % (v(W[st] + 4 * t + 2 * hh, 2),
                                                                 12288 + t * 8192 + kk * 4096 + hh * 512))
        for rt in range(6):
            r.append("ds_read_b128 %s, v%d offset:%d" % (v(X[st] + 4 * rt, 4), 4 + kk, rt * 2048))
        return r

    def mfmaA(st):
        m = []
        for rt in range(6):
            m.append(mm32(Q + 4 * rt, W[st], X[st] + 4 * rt, 1))
            m.append(mm32(K + 4 * rt, W[st] + 4, X[st] + 4 * rt, 1))
            m.append(mm32(V + 4 * rt, X[st] + 4 * rt, W[st] + 8, 1))
        return m

    main_loop(a, "A", mfmaA, readsA, [4, 6, 5], 5, 8, 8)
    e = ["v_readfirstlane_b32 s%d, v22" % (S_OF + 2), "v_readfirstlane_b32 s%d, v23" % (S_OS + 2)]
    Qp, Kp, Vp, T, M = 176, 188, 200, 212, 236
    Sc, Sp, Oa, Sm = Q, K, V, K
    for b in range(6):
        for (src, dst) in ((Q, Qp), (K, Kp), (V, Vp)):
            e.append(cv(dst + 2 * b, v(src + 4 * b), v(src + 4 * b + 1)))
            e.append(cv(dst + 2 * b + 1, v(src + 4 * b + 2), v(src + 4 * b + 3)))
    for b in range(6):
        e.append("v_mfma_f32_16x16x16_bf16 %s, %s, %s, v[8:11]" % (v(Sc + 4 * b, 4), v(Kp + 2 * b, 2), v(Qp + 2 * b, 2)))
        if b:
            e.append("v_mfma_f32_16x16x16_bf16 %s, %s, %s, v[12:15]" % (v(Sp + 4 * b, 4), v(Kp + 2 * b - 2, 2), v(Qp + 2 * b, 2)))
            for r in range(4):
                e.append("v_max_f32 v%d, v%d, v%d" % (Sc + 4 * b + r, Sc + 4 * b + r, Sp + 4 * b + r))
        for r in range(4):
            e.append(cv(Sc + 4 * b + r, "0", v(Sc + 4 * b + r)))
        m = M + 4 * (b >> 1) + (b & 1)
        e.append("v_max3_f32 v%d, v%d, v%d, v%d" % (m, Sc + 4 * b, Sc + 4 * b + 1, Sc + 4 * b + 2))
        e.append("v_max_f32 v%d, v%d, v%d" % (m, m, Sc + 4 * b + 3))
    for p in range(3):
        m = M + 4 * p
        e.append("v_permlane32_swap_b32 v%d, v%d" % (m, m + 1))
        e.append("v_max_f32 v%d, v%d, v%d" % (m, m, m + 1))
        e.append("v_mov_b32 v%d, v%d" % (m + 1, m))
        e.append("v_permlane16_swap_b32 v%d, v%d" % (m, m + 1))
        e.append("v_max_f32 v%d, v%d, v%d" % (m, m, m + 1))
        e.append("v_mul_f32 v%d, s56, v%d" % (m + 2, m))
        e.append("v_mul_f32 v%d, s56, v%d" % (m + 3, m))
        e.append("v_permlane32_swap_b32 v%d, v%d" % (m + 2, m + 3))
    for b in range(6):
        m = M + 4 * (b >> 1) + 2
        for h2 in range(2):
            d = v(Sc + 4 * b + 2 * h2, 2)
            e.append("v_pk_fma_f32 %s, %s, s[56:57], %s op_sel:[0,0,%d] op_sel_hi:[1,1,%d] neg_lo:[0,0,1] neg_hi:[0,0,1]"
                     % (d, d, v(m, 2), b & 1, b & 1))
        for r in range(4):
            e.append("v_exp_f32 v%d, v%d" % (Sc + 4 * b + r, Sc + 4 * b + r))
        e.append(cv(T + 4 * b + 2, v(Sc + 4 * b), v(Sc + 4 * b + 1)))
        e.append(cv(T + 4 * b + 3, v(Sc + 4 * b + 2), v(Sc + 4 * b + 3)))
        e.append("v_mfma_f32_16x16x16_bf16 %s, v[20:21], %s, 0" % (v(Sm + 4 * b, 4), v(T + 4 * b + 2, 2)))
        if b == 0:
            e.append("v_mfma_f32_16x16x16_bf16 %s, %s, %s, 0" % (v(Oa, 4), v(Vp, 2), v(T + 2, 2)))
        else:
            e.append("v_and_b32 v%d, v18, v%d" % (T + 4 * b, T + 4 * b + 2))
            e.append("v_and_b32 v%d, v19, v%d" % (T + 4 * b + 1, T + 4 * b + 3))
            e.append("v_and_b32 v%d, v16, v%d" % (T + 4 * b + 2, T + 4 * b + 2))
            e.append("v_and_b32 v%d, v17, v%d" % (T + 4 * b + 3, T + 4 * b + 3))
            e.append(mm32(Oa + 4 * b, Vp + 2 * b - 2, T + 4 * b, 0))
        e.append("v_rcp_f32 v%d, v%d" % (Sm + 4 * b, Sm + 4 * b))
        for h2 in range(2):
            d = v(Oa + 4 * b + 2 * h2, 2)
            e.append("v_pk_mul_f32 %s, %s, %s op_sel_hi:[1,0]" % (d, d, v(Sm + 4 * b, 2)))
        o = Sc + 8 * (b >> 1) + 2 * (b & 1)
        e.append(cv(o, v(Oa + 4 * b), v(Oa + 4 * b + 1)))
        e.append(cv(o + 1, v(Oa + 4 * b + 2), v(Oa + 4 * b + 3)))
        if b & 1:
            p = b >> 1
            o = Sc + 8 * p
            e.append("v_permlane16_swap_b32 v%d, v%d" % (o, o + 2))
            e.append("v_permlane16_swap_b32 v%d, v%d" % (o + 1, o + 3))
            for sd, so, fl in ((S_OF, "s58", ""), (S_OS, "0", " sc1")):
                e.append("buffer_store_dwordx4 %s, v%d, %s, %s offen%s" % (v(o, 4), (27, 26, 25)[p], sr(sd), so, fl))
    tail_region(a, mfmaA, readsA(1, 1) + ["ds_read_b64 v[22:23], v7 offset:%d" % C_SIZES], e, "A")
    stamp(a, 3)
    a("s_branch L_F")

    a.label("L_Bcons")
    a("s_lshl_b32 s49, s2, 3")
    a("s_add_u32 s49, s49, s3")
    a("s_cmp_lg_u32 s49, 7")
    a("s_cbranch_scc1 L_notag")
    a("s_memrealtime s[64:65]")
    a("v_mov_b32 v32, 0")
    a("s_waitcnt lgkmcnt(0)")
    srd(a, S_DBG, 22, 256)
    a("s_or_b32 s65, s65, 0x40000000")
    a("v_mov_b32 v30, s64")
    a("v_mov_b32 v31, s65")
    a("s_mov_b64 exec, 1")
    a("buffer_store_dwordx2 v[30:31], v32, %s, 0 offen sc1" % sr(S_DBG))
    a("s_mov_b64 exec, -1")
    a.label("L_notag")
    a("s_setprio 1")
    a("s_sub_u32 s48, s3, 4")
    Aa, Ba = 32, 64
    X = [96, 136]
    W = [128, 168]
    CR, CI, NCI = 176, 184, 192
    lane_xaddr(a, 4, 5, 1, 2)
    a("s_lshl_b32 s49, s48, 11")
    a("s_add_u32 s49, s49, 16384")
    a("v_add_u32 v6, s49, v4")
    a("v_add_u32 v7, s49, v5")
    a("v_lshlrev_b32 v3, 6, v1")
    a("v_lshl_add_u32 v3, v2, 3, v3")
    a("v_add_u32 v3, %d, v3" % MAT_LDS)
    for r in range(32, 96):
        a("v_mov_b32 v%d, 0" % r)
    a("s_waitcnt lgkmcnt(0)")

    def xjobB():
        srd(a, S_PF, 10, 2048 * 1024)
        a("s_lshl_b32 s64, s45, 2")
        a("s_add_u32 s64, s64, s44")
        a("s_lshl_b32 s64, s64, 10")
        a("v_lshlrev_b32 v24, 16, v0")
        a("s_mov_b32 s66, -1")

    def w3jobB():
        a("s_lshl_b32 s64, s44, 16")
        a("s_mov_b64 s[66:67], -1")
        a("s_cmp_eq_u32 s46, 0")
        a("s_cbranch_scc1 LB_j3re")
        srd(a, S_PF, 18, 512 * 1024)
        a("s_branch LB_jd")
        a.label("LB_j3re")
        srd(a, S_PF, 16, 512 * 1024)

    consumer_side_jobs(a, "B", xjobB, w3jobB)
    a("s_add_u32 s49, s44, s48")
    a("s_cmp_eq_u32 s49, 0")
    a("s_cselect_b32 s56, 0x00010001, 0")
    a("s_mov_b32 s57, s56")
    a("v_mul_u32_u24 v10, %d, v2" % (64 * U_ROW))
    a("s_mul_i32 s49, s45, %d" % U_ROW)
    a("s_add_u32 s49, s49, 0x%x" % U_OFF)
    a("v_add_u32 v10, s49, v10")
    a("v_lshl_add_u32 v11, v1, 11, v10")
    a("v_mov_b32 v9, 0x80000000")
    a("v_cmp_gt_u32 vcc, 2, v1")
    a("v_cndmask_b32 v11, v9, v11, vcc")
    a("s_lshr_b32 s49, s44, 1")
    a("s_lshl_b32 s49, s49, 2")
    a("s_add_u32 s49, s49, s48")
    a("s_lshl_b32 s49, s49, 4")
    a("s_and_b32 s51, s44, 1")
    a("s_mul_i32 s51, s51, 136")
    a("s_add_u32 s49, s49, s51")
    a("v_add_u32 v12, s49, v1")
    a("v_lshl_add_u32 v10, v12, 4, v10")
    a("v_cndmask_b32 v10, v10, v9, s[56:57]")
    for k in range(8):
        a("s_mov_b32 s%d, %d" % (UOFFS[k], (16 * (k >> 2) + (k & 3)) * 16 * U_ROW))
    a("s_mov_b32 s58, 0x80008000")
    srd(a, S_WS, 24, WS_REC)
    srd(a, S_OF, 24, 0)
    srd(a, S_OS, 24, WS_REC)
    a("s_add_u32 s73, s44, 24")
    a("s_lshl_b32 s73, s73, 8")
    a("s_lshl_b32 s74, s45, 3")
    a("s_add_u32 s73, s73, s74")
    a("s_mov_b32 s74, 0xff")

    def readsB(st, kk):
        r = []
        for t in range(2):
            r.append("ds_read_b128 %s, v%d offset:%d" % (v(W[st] + 4 * t, 4), 6 + kk, t * 8192))
        for rt in range(8):
            r.append("ds_read_b128 %s, v%d offset:%d" % (v(X[st] + 4 * rt, 4), 4 + kk, rt * 2048))
        return r

    def mfmaB(st):
        return [mm32(acc + 4 * rt, X[st] + 4 * rt, W[st] + 4 * t, 1) for rt in range(8) for t, acc in ((0, Aa), (1, Ba))]

    main_loop(a, "B", mfmaB, readsB, [4, 6, 5, 7], 7, 7, 4)
    PA, PB = 200, 216
    rds = readsB(1, 1)
    for tab, dst in ((0, CR), (1, CI)):
        for tau in range(2):
            for hh in range(2):
                rds.append("ds_read_b64 %s, v3 offset:%d" % (v(dst + 4 * tau + 2 * hh, 2), tab * 2048 + tau * 1024 + hh * 32))
    e = []
    for r in range(8):
        e.append("v_xor_b32 v%d, s58, v%d" % (NCI + r, CI + r))
    for rt in range(8):
        for (src, dst) in ((Aa, PA), (Ba, PB)):
            e.append(cv(dst + 2 * rt, v(src + 4 * rt), v(src + 4 * rt + 1)))
            e.append(cv(dst + 2 * rt + 1, v(src + 4 * rt + 2), v(src + 4 * rt + 3)))
    ur = lambda tau, sl: Aa + 8 * sl + 4 * tau
    ui = lambda tau, sl: Ba + 8 * sl + 4 * tau

    def ustore(e, voff, D):
        for tau in range(2):
            for r in range(4):
                d = D + 4 * (4 * tau + r)
                for p in range(2):
                    e.append(cv(d + p, v(ur(tau, 2 * p) + r), v(ur(tau, 2 * p + 1) + r)))
                    e.append(cv(d + 2 + p, "-" + v(ui(tau, 2 * p) + r), "-" + v(ui(tau, 2 * p + 1) + r)))
                e.append("buffer_store_dwordx4 %s, v%d, %s, s%d offen sc1" % (v(d, 4), voff, sr(S_WS), UOFFS[4 * tau + r]))

    for sl in range(4):
        for tau in range(2):
            e.append(mm32(ur(tau, sl), CR + 4 * tau, PA + 4 * sl, 0))
            e.append(mm32(ur(tau, sl), NCI + 4 * tau, PB + 4 * sl, 1))
            e.append(mm32(ui(tau, sl), CI + 4 * tau, PA + 4 * sl, 0))
            e.append(mm32(ui(tau, sl), CR + 4 * tau, PB + 4 * sl, 1))
    ustore(e, 10, 96)
    tail_region(a, mfmaB, rds, e, "B")
    a("s_cmp_eq_u32 s56, 0")
    a("s_cbranch_scc1 L_Bdone")
    e = []
    for r in range(16):
        e.append("v_mov_b32_dpp v%d, v%d row_shr:1 row_mask:0xf bank_mask:0xf" % (PA + r, PB + r))
    for sl in range(4):
        for tau in range(2):
            e.append(mm32(ur(tau, sl), CR + 4 * tau, PA + 4 * sl, 0))
            e.append(mm32(ui(tau, sl), CI + 4 * tau, PA + 4 * sl, 0))
    ustore(e, 11, 136)
    for ln in schedule(e)[0]:
        a(ln)
    a.label("L_Bdone")
    stamp(a, 3)

    a.label("L_F")
    a("v_mov_b32 v19, %d" % CTL)
    a("ds_read_b64 v[22:23], v19")
    a("v_mov_b32 v21, 1")
    a("v_lshlrev_b32 v16, 10, v0")
    a("s_add_u32 s73, s73, 0x%x" % FLAG_OFF)
    a("s_mov_b64 exec, 1")
    a("s_waitcnt vmcnt(0)")
    stamp(a, 4)
    a("ds_add_rtn_u32 v20, v19, v21 offset:%d" % C_DONE)
    a("s_waitcnt lgkmcnt(0)")
    a("v_readfirstlane_b32 s49, v20")
    a("s_cmp_lg_u32 s49, 3")
    a("s_cbranch_scc1 L_nosig")
    a("s_mov_b32 exec_lo, s74")
    a("buffer_store_dwordx2 v[22:23], v16, %s, s73 offen" % sr(S_OF))
    a("buffer_store_dwordx2 v[22:23], v16, %s, s73 offen sc1" % sr(S_OS))
    a.label("L_nosig")
    a("s_mov_b64 exec, -1")
    stamp(a, 6)
    a("v_readfirstlane_b32 s94, v22")
    a("v_readfirstlane_b32 s95, v23")
    a("s_lshl_b32 s68, s26, 2")
    a("s_and_b32 s69, s27, 3")
    a("s_add_u32 s68, s68, s69")
    a("s_lshr_b32 s69, s27, 2")
    a("v_and_b32 v1, 15, v0")
    a("v_lshrrev_b32 v2, 4, v0")
    a("v_lshrrev_b32 v4, 1, v2")
    if RELAY:
        a("s_lshl_b32 s56, s26, 8")
        a("s_add_u32 s56, s56, 0x%x" % RELAY_OFF)
        a("s_lshl_b32 s49, s27, 3")
        a("s_add_u32 s49, s49, s3")
        a("s_cmp_lg_u32 s49, %d" % (RELAY_IDX * 8 + 5))
        a("s_cbranch_scc1 L_norelay")
        watch(a, "Rs", C_STAGED, 4)
        a("ds_read_b64 v[10:11], v19 offset:%d" % C_SIZES)
        a("s_lshl_b32 s49, s26, 10")
        a("s_add_u32 s49, s49, 0x%x" % (24 * 256 + FLAG_OFF))
        a("v_lshl_add_u32 v18, v2, 8, s49")
        a("v_lshl_add_u32 v18, v1, 3, v18")
        a("s_waitcnt lgkmcnt(0)")
        a("v_readfirstlane_b32 s%d, v10" % (S_OF + 2))
        a("v_readfirstlane_b32 s%d, v11" % (S_OS + 2))
        a("s_mov_b32 s49, 0")
        for k in range(RPIPE - 1):
            a("buffer_load_dwordx2 %s, v18, %s, 0 offen sc1" % (v(24 + 2 * k, 2), sr(S_WS)))
            a("s_sleep %d" % RSLEEP)
        a.label("L_rpoll")
        for k in range(RPIPE):
            a("buffer_load_dwordx2 %s, v18, %s, 0 offen sc1" % (v(24 + 2 * ((k + RPIPE - 1) % RPIPE), 2), sr(S_WS)))
            a("s_waitcnt vmcnt(%d)" % (RPIPE - 1))
            a("v_cmp_eq_u64 vcc, s[94:95], %s" % v(24 + 2 * k, 2))
            a("s_cmp_eq_u64 vcc, -1")
            a("s_cbranch_scc1 L_rdone")
            if RPIPE == 1:
                a("s_sleep %d" % RSLEEP)
        a("s_add_u32 s49, s49, 1")
        a("s_cmp_lt_u32 s49, 0x4000")
        a("s_cbranch_scc1 L_rpoll")
        a.label("L_rdone")
        a("s_mov_b64 exec, 1")
        a("buffer_store_dwordx2 v[22:23], v16, %s, s56 offen" % sr(S_OF))
        a("buffer_store_dwordx2 v[22:23], v16, %s, s56 offen sc1" % sr(S_OS))
        a("s_mov_b64 exec, -1")
        a("s_waitcnt vmcnt(0)")
        a.label("L_norelay")
        a("v_mov_b32 v18, s56")
    else:
        a("s_sub_u32 s56, 7, s69")
        a("s_sub_u32 s57, 8, s69")
        a("s_and_b32 s57, s57, 3")
        a("s_cmp_lt_u32 s69, 4")
        a("s_cselect_b32 s56, s69, s56")
        a("s_cselect_b32 s57, s69, s57")
        a("s_lshl_b32 s49, s26, 2")
        a("s_add_u32 s49, s49, %d" % (24 + (FLAG_OFF >> 8)))
        for k in range(2):
            a("s_add_u32 s%d, s%d, s49" % (56 + k, 56 + k))
            a("s_lshl_b32 s%d, s%d, 8" % (56 + k, 56 + k))
        a("v_mov_b32 v18, s57")
        a("v_mov_b32 v17, s56")
        a("v_cmp_gt_u32 vcc, 16, v0")
        a("v_cndmask_b32 v18, v18, v17, vcc")
        a("v_lshl_add_u32 v18, v1, 3, v18")
    a("v_lshrrev_b32 v6, 1, v1")
    a("v_xor_b32 v6, v6, v4")
    a("v_lshlrev_b32 v6, 4, v6")
    a("v_lshl_add_u32 v6, v1, 7, v6")
    a("v_and_b32 v15, 1, v2")
    a("v_lshl_add_u32 v6, v15, 3, v6")
    a("v_add_u32 v6, %d, v6" % WS_LDS)
    for c in range(1, 4):
        a("v_xor_b32 v%d, %d, v6" % (6 + c, 32 * c))
    a("s_movk_i32 s57, 136")
    a("s_lshl_b32 s52, s69, 2")
    a("s_add_u32 s52, s52, s48")
    a("s_lshl_b32 s52, s52, 4")
    a("v_add_u32 v12, s52, v1")
    a("v_sub_u32 v13, 512, v12")
    a("v_min_u32 v12, v12, v13")
    a("v_and_b32 v13, 1, v12")
    a("v_lshrrev_b32 v12, 1, v12")
    a("v_mad_u32_u24 v12, v13, s57, v12")
    a("v_mul_u32_u24 v13, %d, v2" % U_ROW)
    a("v_lshl_add_u32 v12, v12, 4, v13")
    a("s_mul_i32 s53, s68, %d" % (16 * U_ROW))
    a("s_add_u32 s53, s53, 0x%x" % U_OFF)
    a("v_add_u32 v12, s53, v12")
    wait_flags(a, "F", 4, "1" if RELAY else "-1", C_FGO)
    stamp(a, 7)
    WSF, UF, ACC = 176, 24, 40
    for c in range(4):
        a("s_mov_b32 s54, %d" % (4 * U_ROW * c))
        a("buffer_load_dwordx4 %s, v12, %s, s54 offen sc1" % (v(UF + 4 * c, 4), sr(S_WS)))
    watch(a, "Fs", C_TW, 4)
    for c in range(4):
        for rho in range(4):
            a("ds_read_b64 %s, v%d offset:%d" % (v(WSF + 16 * rho + 4 * c, 2), 6 + c, rho * 2048))
            a("ds_read_b64 %s, v%d offset:%d" % (v(WSF + 16 * rho + 4 * c + 2, 2), 6 + c, 8192 + rho * 2048))
    srd(a, S_OUT, 20, 2048 * 2048)
    a("v_and_b32 v13, 31, v0")
    a("v_lshl_add_u32 v13, v13, 5, s68")
    a("v_sub_u32 v14, 2048, v13")
    a("s_cmp_ge_u32 s69, 4")
    a("s_cselect_b64 s[56:57], -1, 0")
    a("v_cndmask_b32 v13, v13, v14, s[56:57]")
    a("v_xor_b32 v14, 1024, v13")
    a("v_and_b32 v13, 2047, v13")
    a("v_and_b32 v14, 2047, v14")
    a("s_lshl_b32 s52, s52, 1")
    a("s_add_u32 s52, s52, 1024")
    a("v_lshl_add_u32 v15, v4, 4, s52")
    a("v_lshl_add_u32 v13, v13, 11, v15")
    a("v_lshl_add_u32 v14, v14, 11, v15")
    for c in range(4):
        a("s_waitcnt vmcnt(%d) lgkmcnt(%d)" % (3 - c, min(15, 8 * (3 - c))))
        if c == 0:
            stamp(a, 8)
        for rho in range(4):
            a(mm32(ACC + 4 * rho, UF + 4 * c, WSF + 16 * rho + 4 * c, c))
    stamp(a, 9)
    out_tiles(a, ACC, 56, [(13, 0), (14, 0)])
    stamp(a, 10)
    stamp_flush(a)
    a.label("L_end")
    a("s_endpgm")
    return a.finish()


def kd(name, vgpr, sgpr=102):
    acc = (vgpr + 3) // 4 * 4
    return """.amdhsa_kernel %s
  .amdhsa_next_free_vgpr %d
  .amdhsa_next_free_sgpr %d
  .amdhsa_accum_offset %d
  .amdhsa_group_segment_fixed_size 0
  .amdhsa_kernarg_size 88
  .amdhsa_user_sgpr_count 2
  .amdhsa_user_sgpr_kernarg_segment_ptr 1
  .amdhsa_system_sgpr_workgroup_id_x 1
.end_amdhsa_kernel
""" % (name, vgpr, sgpr, acc)


def main():
    k = NAME + "_kernel"
    head = open(os.path.join(os.path.dirname(os.path.abspath(__file__)), "header.txt")).read()
    out = head
    out += "; @launch grid=(256,1,1) block=(512,1,1) lds=%d\n" % LDS_BYTES
    out += '.amdgcn_target "amdgcn-amd-amdhsa--gfx950"\n.text\n'
    out += ".globl %s\n.p2align 8\n.type %s,@function\n%s:\n" % (k, k, k) + kernel()
    out += '.section .rodata,"a"\n'
    out += ".p2align 6\n" + kd(k, 256)
    dst = [x for x in sys.argv[1:] if not x.startswith("--")]
    open(dst[0] if dst else "cdna_kernels/%s.s" % NAME, "w").write(out)


if __name__ == "__main__":
    main()
```

```python
import sys
import os
sys.path.insert(0, os.path.dirname(os.path.abspath(__file__)))
from asmlib import Asm, Ins, schedule

NAME = "concat_heads__sliding_local_dilated__spectral_fnet__prompt"
OPT = set(x for x in sys.argv[1:] if x.startswith("--"))


def optint(name, default):
    x = [o[len(name) + 3:] for o in OPT if o.startswith("--%s=" % name)]
    return int(x[0]) if x else default


STAMP = "--stamp" in OPT
NOITER = "--iter" not in OPT
THR = optint("thr", 5)
SLEEP = optint("sleep", 1)
WSLEEP = optint("wsleep", 1)
INFO_AT = optint("info", 6)
PF = "--nopf" not in OPT
NSPF = optint("nspf", 12)
GI = optint("gi", 8)
CROT = optint("crot", 0)
RELAY = "--norelay" not in OPT
RSLEEP = optint("rsleep", 3)
RPIPE = optint("rpipe", 1)
STOUCH = optint("stouch", 0)
BWAIT = optint("bwait", 0)
BPAUSE = optint("bpause", 6)
BROT = "--brot" in OPT
BLOOK = optint("blook", 12)
BPRIO = optint("bprio", 0)
TPOS = optint("tpos", 0)
WOPF = "--wopf" in OPT
CODEPF = "--nocodepf" not in OPT
TWPK = "--notwpk" not in OPT
PACE = "--pace" in OPT
FWAIT = "--fwait" in OPT
KROT = "--nokrot" not in OPT
FORCE_SLOW = "--slow" in OPT

SLOT = 36864
MAT_LDS = 3 * SLOT + 32768
WS_LDS = 4 * SLOT
CTL = 65536
C_DONE, C_GGO, C_FGO, C_STAGED, C_TW, C_ISS, C_SIZES, C_OBASE = 8, 12, 16, 20, 24, 28, 32, 40
LDS_BYTES = 163840
U_OFF = 2 << 20
U_ROW = 544 * 4
X_LDS, E_LDS, E_STR = 69632, 102400, 2064
FLAG_OFF = 6 << 20
EARLY_OFF = FLAG_OFF + 64 * 256
RELAY_OFF = FLAG_OFF + 80 * 256
MIX_LINES = 72
OF_OFF = 10 << 20
STAMP_OFF = 8 << 20
WS_REC = 16 << 20

S_X, S_W1, S_W2, S_WS, S_WO, S_TR, S_TI, S_DBG, S_OUT = 28, 32, 36, 40, 64, 76, 80, 84, 88
S_OF, S_OS, S_PF = 28, 32, 36
UOFFS = list(range(76, 84))


def v(i, n=1):
    return "v%d" % i if n == 1 else "v[%d:%d]" % (i, i + n - 1)


def sr(i):
    return "s[%d:%d]" % (i, i + 3)


def srd(a, d, base, nbytes):
    a("s_mov_b32 s%d, s%d" % (d, base))
    a("s_and_b32 s%d, s%d, 0xffff" % (d + 1, base + 1))
    a("s_mov_b32 s%d, 0x%x" % (d + 2, nbytes))
    a("s_mov_b32 s%d, 0x20000" % (d + 3))


def cv(d, x, y):
    return "v_cvt_pk_bf16_f32 v%d, %s, %s" % (d, x, y)


def mm32(d, x, y, c):
    return "v_mfma_f32_16x16x32_bf16 %s, %s, %s, %s" % (v(d, 4), v(x, 4), v(y, 4), v(d, 4) if c else "0")


def stamp(a, slot, clk=False):
    if not STAMP or (NOITER and isinstance(slot, str)):
        return
    for which, add in ((("s_memtime" if clk else "s_memrealtime"), 0), ("s_memtime", 32)):
        if add and (clk or "--dual" not in OPT):
            continue
        a("%s s[100:101]" % which)
        a("s_waitcnt lgkmcnt(0)")
        if isinstance(slot, str):
            a("s_mov_b32 s99, m0")
            a("s_add_u32 m0, %s, %d" % (slot, 12 + add))
            a("v_writelane_b32 v249, s100, m0")
            a("s_mov_b32 m0, s99")
        else:
            a("v_writelane_b32 v249, s100, %d" % (slot + add))


def stamp_init(a):
    if STAMP:
        a("v_mov_b32 v249, 0xa5a5a5a5")
        stamp(a, 30, clk=True)
        stamp(a, 29)


def stamp_flush(a):
    if not STAMP:
        return
    a("s_waitcnt vmcnt(0)")
    stamp(a, 31, clk=True)
    stamp(a, 28)
    a("s_lshl_b32 s92, s2, 3")
    a("s_add_u32 s92, s92, s3")
    a("s_lshl_b32 s92, s92, 7")
    a("s_add_u32 s92, s92, 0x%x" % STAMP_OFF)
    a("v_lshlrev_b32 v250, 2, v0")
    a("v_lshrrev_b32 v251, 5, v0")
    a("v_mul_u32_u24 v251, %d, v251" % (256 * 8 * 128 - 128))
    a("v_add_u32 v250, v250, v251")
    a("s_mov_b64 exec, -1")
    a("buffer_store_dword v249, v250, %s, s92 offen" % sr(S_WS))


def early_setup(a):
    srd(a, S_WS, 24, WS_REC)
    a("s_lshl_b32 s49, s26, 8")
    a("s_add_u32 s49, s49, 0x%x" % EARLY_OFF)
    a("v_and_b32 v24, 31, v0")
    a("v_lshl_add_u32 v24, v24, 2, s49")


def publish_die(a, tag):
    a("s_waitcnt lgkmcnt(0)")
    a("s_cmp_lg_u32 s95, 0")
    a("s_cbranch_scc1 L%s_tagok" % tag)
    srd(a, S_DBG, 22, 256)
    a("v_mov_b32 v25, 0")
    a("s_mov_b32 s49, 0")
    a.label("L%s_tag" % tag)
    a("buffer_load_dwordx2 v[22:23], v25, %s, 0 offen sc1" % sr(S_DBG))
    a("s_add_u32 s49, s49, 1")
    a("s_waitcnt vmcnt(0)")
    a("v_readfirstlane_b32 s94, v22")
    a("v_readfirstlane_b32 s95, v23")
    a("s_cmp_ge_u32 s49, 0x8000")
    a("s_cbranch_scc1 L%s_tagok" % tag)
    a("s_cmp_eq_u32 s95, 0")
    a("s_cbranch_scc1 L%s_tag" % tag)
    a.label("L%s_tagok" % tag)
    early_setup(a)
    a("s_getreg_b32 s96, hwreg(HW_REG_XCC_ID, 0, 4)")
    a("s_lshl_b32 s49, s94, 4")
    a("s_or_b32 s96, s96, s49")
    a("v_mov_b32 v23, s96")
    a("s_lshl_b64 exec, 1, s27")
    a("buffer_store_dword v23, v24, %s, 0 offen sc1" % sr(S_WS))
    a("s_mov_b64 exec, -1")


def ctl_init(a):
    a("v_mov_b32 v24, s94")
    a("v_mov_b32 v25, s95")
    for r in range(26, 30):
        a("v_mov_b32 v%d, 0" % r)
    a("ds_write_b128 v19, v[24:27]")
    a("ds_write_b128 v19, v[26:29] offset:16")


def verdict(a, tag, quick):
    if quick:
        a("s_mov_b32 s97, s96")
        a("s_xor_b64 s[56:57], s[60:61], s[96:97]")
        for k in range(1, 16):
            a("s_xor_b64 s[58:59], s[%d:%d], s[96:97]" % (60 + 2 * k, 61 + 2 * k))
            a("s_or_b64 s[56:57], s[56:57], s[58:59]")
        a("s_cmp_eq_u64 s[56:57], %s" % ("5" if FORCE_SLOW else "0"))
        a("s_cbranch_scc1 L%s_known" % tag)
    early_setup(a)
    a("s_mov_b32 s49, 0")
    a.label("L%s_info" % tag)
    a("buffer_load_dword v26, v24, %s, 0 offen sc1" % sr(S_WS))
    a("s_add_u32 s49, s49, 1")
    a("s_waitcnt vmcnt(0)")
    a("v_xor_b32 v26, s96, v26")
    a("v_cmp_gt_u32 vcc, 16, v26")
    a("s_cmp_ge_u32 s49, 0x8000")
    a("s_cbranch_scc1 L%s_infook" % tag)
    a("s_cmp_lg_u64 vcc, -1")
    a("s_cbranch_scc1 L%s_info" % tag)
    a.label("L%s_infook" % tag)
    a("v_cmp_eq_u32 vcc, 0, v26")
    a("s_cmp_eq_u64 vcc, %s" % ("5" if FORCE_SLOW else "-1"))
    a.label("L%s_known" % tag)
    a("s_cselect_b32 s56, 0x%x, 0" % WS_REC)
    a("s_cselect_b32 s57, 0, 0x%x" % WS_REC)
    a("s_cselect_b32 s58, 0x%x, 0" % OF_OFF)
    a("v_mov_b32 v28, s56")
    a("v_mov_b32 v29, s57")
    a("v_mov_b32 v30, s58")
    a("v_mov_b32 v31, 0")
    a("ds_write_b128 v19, v[28:31] offset:%d" % C_SIZES)


def loader_loop(a, tag, loads, nper, lead):
    a("s_branch L%s_issue" % tag)
    a.label("L%s_wait" % tag)
    a("s_waitcnt vmcnt(%d)" % nper)
    stamp(a, "s53")
    a("s_barrier")
    a.label("L%s_issue" % tag)
    a("s_add_u32 m0, s55, s52")
    for i, (vr, sd, so) in enumerate(loads):
        if i:
            a("s_add_u32 m0, m0, 4096")
        a("buffer_load_dwordx4 v%d, %s, s%d offen lds" % (vr, sr(sd), so))
    if not lead:
        pass
    else:
        a("s_bitcmp1_b32 s59, s53")
        a("s_cbranch_scc0 L%s_nojob" % tag)
        a("s_cmp_lg_u32 s53, 2")
        a("s_cbranch_scc1 L%s_job2" % tag)
        a("s_load_dwordx2 s[94:95], s[22:23], 0")
        a("s_branch L%s_nojob" % tag)
        a.label("L%s_job2" % tag)
        a("s_cmp_lg_u32 s53, 3")
        a("s_cbranch_scc1 L%s_job3" % tag)
        publish_die(a, tag)
        a("s_branch L%s_nojob" % tag)
        a.label("L%s_job3" % tag)
        a("s_lshl_b32 s49, s26, 8")
        a("s_add_u32 s49, s49, 0x%x" % EARLY_OFF)
        a("s_load_dwordx16 s[60:75], s[24:25], s49")
        a("s_add_u32 s49, s49, 64")
        a("s_load_dwordx16 s[76:91], s[24:25], s49")
    a.label("L%s_nojob" % tag)
    a("s_add_u32 s50, s50, 128")
    a("s_add_u32 s51, s51, s54")
    a("s_add_u32 s53, s53, 1")
    a("s_and_b32 s55, s53, 3")
    a("s_mul_i32 s55, s55, %d" % SLOT)
    a("s_cmp_lt_u32 s53, 2")
    a("s_cbranch_scc1 L%s_issue" % tag)
    a("s_cmp_lt_u32 s53, 8")
    a("s_cbranch_scc1 L%s_wait" % tag)


def loader_scalars(a, wstep):
    a("s_mov_b32 s50, 0")
    a("s_mov_b32 s51, 0")
    a("s_lshl_b32 s52, s3, 10")
    a("s_mov_b32 s53, 0")
    a("s_mov_b32 s54, %d" % wstep)
    a("s_mov_b32 s55, 0")
    a("s_mov_b32 s59, 0x%x" % (4 | 8 | (1 << INFO_AT)))


def interleave(mfmas, reads, per, extra=None, before=None):
    out = []
    k = 0
    for i, m in enumerate(mfmas):
        if before and i in before:
            out.extend(before[i])
        out.append(m)
        out.extend(reads[k:k + per[i]])
        k += per[i]
        if extra and i in extra:
            out.extend(extra[i])
    assert k >= len(reads)
    return out


def lane_xaddr(a, dst0, dst1, t0, t1):
    a("v_and_b32 v%d, 15, v0" % t0)
    a("v_lshrrev_b32 v%d, 4, v0" % t1)
    a("v_lshrrev_b32 v%d, 1, v%d" % (dst1, t0))
    a("v_xor_b32 v%d, v%d, v%d" % (dst1, dst1, t1))
    a("v_lshlrev_b32 v%d, 4, v%d" % (dst1, dst1))
    a("v_lshl_add_u32 v%d, v%d, 7, v%d" % (dst0, t0, dst1))
    a("v_xor_b32 v%d, 64, v%d" % (dst1, dst0))


def lane_traddr(a, dst, t0, t1, t2):
    a("v_and_b32 v%d, 15, v0" % t0)
    a("v_lshrrev_b32 v%d, 4, v0" % t1)
    a("v_lshrrev_b32 v%d, 2, v%d" % (t2, t0))
    a("v_lshl_add_u32 v%d, v%d, 3, v%d" % (dst, t1, t2))
    a("v_lshlrev_b32 v%d, 7, v%d" % (dst, dst))
    a("v_and_b32 v%d, 3, v%d" % (t2, t0))
    a("v_lshl_add_u32 v%d, v%d, 3, v%d" % (dst, t2, dst))
    a("v_lshrrev_b32 v%d, 3, v%d" % (t2, t0))
    a("v_and_b32 v%d, 1, v%d" % (t1, t1))
    a("v_lshl_add_u32 v%d, v%d, 1, v%d" % (t2, t1, t2))
    a("v_lshl_add_u32 v%d, v%d, 5, v%d" % (dst, t2, dst))


def consumer_side_jobs(a):
    if not PF:
        return
    a("s_lshl_b32 s49, s27, 2")
    a("s_add_u32 s49, s49, s48")
    a("s_lshr_b32 s64, s49, 1")
    a("s_lshl_b32 s64, s64, 10")
    a("s_and_b32 s49, s49, 1")
    a("s_lshl_b32 s49, s49, 6")
    a("s_add_u32 s64, s64, s49")
    for k in range(NSPF):
        a("s_load_dword s65, s[6:7], s64 offset:%d" % (192 * 1024 + 384 + 65536 * k))


def main_loop(a, tag, mf, rd, addr_regs, first_wait, bar, nst):
    n = len(mf(0))
    a("s_mov_b32 s60, 0")
    a("s_mov_b32 s62, %d" % SLOT)
    a("s_mov_b32 s63, %d" % (-3 * SLOT))
    stamp(a, 0)
    a("s_barrier")
    stamp(a, 1)
    stamp(a, 26, clk=True)
    for r in rd(0, 0):
        a(r)
    a.label("L%s_loop" % tag)
    a("s_waitcnt lgkmcnt(%d)" % first_wait)
    extra = {0: ["s_add_u32 s60, s60, 1", "s_and_b32 s61, s60, 3"],
             1: ["s_cmp_eq_u32 s61, 0", "s_cselect_b32 s61, s63, s62"]}
    for ln in interleave(mf(0), rd(1, 1), [0, 0, 2, 2, 2] + [1] * n, extra, {2: ["s_waitcnt lgkmcnt(0)"]}):
        a(ln)
    a("s_waitcnt lgkmcnt(0)")
    extra = {0: ["v_add_u32 v%d, s61, v%d" % (r, r) for r in addr_regs[:2]],
             1: ["v_add_u32 v%d, s61, v%d" % (r, r) for r in addr_regs[2:]],
             2: ["s_cmp_lt_u32 s60, %d" % (nst - 1)],
             bar - 1: ["s_barrier"]}
    for ln in interleave(mf(1), rd(0, 0), [0] * bar + [2] * n, extra):
        a(ln)
    if STAMP and not NOITER:
        stamp(a, "s60")
        a("s_cmp_lt_u32 s60, %d" % (nst - 1))
    a("s_cbranch_scc1 L%s_loop" % tag)
    stamp(a, 27, clk=True)
    stamp(a, 2)


def tail_region(a, mf, reads, body, name):
    a("s_waitcnt lgkmcnt(0)")
    lines = list(reads) + ["s_waitcnt lgkmcnt(0)"] + mf(0) + mf(1) + body
    w = len(reads)
    dst = set()
    for r in reads:
        dst |= Ins(r).w
    deps = [(i, w) for i in range(w)]
    deps += [(w, j) for j in range(w + 1, len(lines)) if Ins(lines[j]).r & dst]
    order, t = schedule(lines, deps, {w: 220}, {i: 5000 for i in range(w)})
    sys.stderr.write("%s tail region: %d instructions, model %d cycles\n" % (name, len(order), t))
    for ln in order:
        a(ln)


def watch(a, tag, word, value, tmp=20, slp=None):
    a("s_mov_b32 s49, 0")
    a.label("L%s_watch" % tag)
    a("ds_read_b32 v%d, v19 offset:%d" % (tmp, word))
    a("s_add_u32 s49, s49, 1")
    a("s_waitcnt lgkmcnt(0)")
    a("v_readfirstlane_b32 s51, v%d" % tmp)
    a("s_cmp_ge_u32 s51, %d" % value)
    a("s_cbranch_scc1 L%s_seen" % tag)
    if (WSLEEP if slp is None else slp):
        a("s_sleep %d" % WSLEEP)
    a("s_cmp_lt_u32 s49, 0x80000")
    a("s_cbranch_scc1 L%s_watch" % tag)
    a.label("L%s_seen" % tag)


def wait_flags(a, tag, lead, mask, word, pipe=1):
    a("s_cmp_lg_u32 s3, %d" % lead)
    a("s_cbranch_scc1 L%s_follow" % tag)
    a("s_mov_b32 s49, 0")
    a("s_mov_b64 exec, %s" % mask)
    reg = lambda k: v(20, 2) if pipe == 1 else v(24 + 2 * (k % pipe), 2)
    for k in range(pipe - 1):
        a("buffer_load_dwordx2 %s, v18, %s, 0 offen sc1" % (reg(k), sr(S_WS)))
        a("s_sleep %d" % RSLEEP)
    a.label("L%s_poll" % tag)
    for k in range(pipe):
        a("buffer_load_dwordx2 %s, v18, %s, 0 offen sc1" % (reg(k + pipe - 1), sr(S_WS)))
        a("s_waitcnt vmcnt(%d)" % (pipe - 1))
        a("v_cmp_eq_u64 vcc, s[94:95], %s" % reg(k))
        a("s_cmp_eq_u64 vcc, exec")
        a("s_cbranch_scc1 L%s_pdone" % tag)
    if SLEEP and pipe == 1:
        a("s_sleep %d" % SLEEP)
    a("s_add_u32 s49, s49, 1")
    a("s_cmp_lt_u32 s49, 0x8000")
    a("s_cbranch_scc1 L%s_poll" % tag)
    a.label("L%s_pdone" % tag)
    a("s_mov_b64 exec, -1")
    a("ds_write_b32 v19, v19 offset:%d" % word)
    a("s_branch L%s_seen" % tag)
    a.label("L%s_follow" % tag)
    watch(a, tag, word, 1)


def signal(a, tag, last, mask, stores, wait=True):
    a("v_mov_b32 v21, 1")
    a("v_lshlrev_b32 v16, 10, v0")
    a("s_add_u32 s73, s73, 0x%x" % FLAG_OFF)
    a("s_mov_b64 exec, 1")
    if wait:
        a("s_waitcnt vmcnt(0)")
    stamp(a, 4)
    a("ds_add_rtn_u32 v20, v19, v21 offset:%d" % C_DONE)
    a("s_waitcnt lgkmcnt(0)")
    a("v_readfirstlane_b32 s49, v20")
    a("s_cmp_lg_u32 s49, %d" % last)
    a("s_cbranch_scc1 L%s_nosig" % tag)
    a("s_mov_b64 exec, %s" % mask)
    for sd, fl in stores:
        a("buffer_store_dwordx2 v[22:23], v16, %s, s73 offen%s" % (sr(sd), fl))
    if tag == "B":
        a("ds_add_u32 v19, v21 offset:%d" % C_DONE)
    a.label("L%s_nosig" % tag)
    a("s_mov_b64 exec, -1")
    stamp(a, 11)


def out_tiles(a, acc, tmp, stores):
    for t in range(4):
        a(cv(tmp + 2 * t, v(acc + 4 * t), v(acc + 4 * t + 1)))
        a(cv(tmp + 2 * t + 1, v(acc + 4 * t + 2), v(acc + 4 * t + 3)))
    for p in range(2):
        a("v_permlane16_swap_b32 v%d, v%d" % (tmp + 4 * p, tmp + 4 * p + 2))
        a("v_permlane16_swap_b32 v%d, v%d" % (tmp + 4 * p + 1, tmp + 4 * p + 3))
        a("buffer_store_dwordx4 %s, v%d, %s, 0 offen offset:%d" % (v(tmp + 4 * p, 4), stores[p][0], sr(S_OUT), stores[p][1]))


def kernel():
    a = Asm()
    a.label("L_entry")
    a("s_cmp_ge_u32 s2, 256")
    a("s_cbranch_scc1 L_end")
    stamp_init(a)
    a("s_load_dwordx16 s[4:19], s[0:1], 0")
    a("s_load_dwordx4 s[20:23], s[0:1], 64")
    a("s_load_dwordx2 s[24:25], s[0:1], 80")
    a("v_lshrrev_b32 v1, 6, v0")
    a("v_and_b32 v0, 63, v0")
    a("v_readfirstlane_b32 s3, v1")
    a("s_and_b32 s26, s2, 7")
    a("s_lshr_b32 s27, s2, 3")
    a("v_lshrrev_b32 v1, 3, v0")
    a("v_and_b32 v2, 7, v0")
    a("v_lshrrev_b32 v3, 1, v1")
    a("s_cmp_lt_u32 s27, 8")
    a("s_cbranch_scc1 L_B")
    a("s_and_b32 s44, s27, 7")
    a("s_lshr_b32 s45, s27, 3")
    a("s_sub_u32 s45, s45, 1")
    a("s_lshr_b32 s46, s26, 2")
    a("s_and_b32 s47, s26, 3")
    a("s_lshl_b32 s47, s47, 8")
    a("s_mul_i32 s49, s45, 88")
    a("s_add_u32 s47, s47, s49")
    a("s_sub_u32 s47, s47, 16")
    a("s_max_i32 s47, s47, 0")
    a("s_cmp_ge_u32 s3, 4")
    a("s_cbranch_scc1 L_Acons")
    a("s_and_b32 s48, s3, 1")
    a("s_lshl_b32 s49, s48, 2")
    a("v_or_b32 v4, s49, v3")
    a("v_xor_b32 v4, v4, v2")
    a("v_lshlrev_b32 v4, 4, v4")
    a("v_lshl_add_u32 v4, v1, 11, v4")
    a("s_lshl_b32 s49, s3, 3")
    a("s_add_u32 s49, s49, s47")
    a("s_lshl_b32 s49, s49, 1")
    a("s_add_u32 s49, s49, s46")
    a("s_lshl_b32 s49, s49, 10")
    a("v_add_u32 v10, s49, v4")
    a("v_add_u32 v11, 0x10000, v10")
    a("v_add_u32 v12, 0x20000, v10")
    a("v_and_b32 v5, 1, v3")
    a("s_lshl_b32 s49, s48, 1")
    a("v_or_b32 v5, s49, v5")
    a("v_lshlrev_b32 v5, 1, v5")
    a("v_xor_b32 v5, v5, v2")
    a("v_lshlrev_b32 v5, 4, v5")
    a("s_lshl_b32 s49, s3, 3")
    a("v_add_u32 v6, s49, v1")
    a("v_mul_u32_u24 v6, 3072, v6")
    a("s_lshl_b32 s49, s44, 7")
    a("v_add3_u32 v13, v6, v5, s49")
    for i in range(1, 6):
        a("v_add_u32 v%d, 0x%x, v13" % (13 + i, (i & 1) * 32 * 3072 + (i >> 1) * 1024))
    loader_scalars(a, 64 * 3072)
    a("s_waitcnt lgkmcnt(0)")
    srd(a, S_X, 4, 2048 * 1024)
    srd(a, S_W1, 6, 512 * 3072)
    stamp(a, 0)
    lds_loads = [(10 + i, S_X, 50) for i in range(3)] + [(13 + i, S_W1, 51) for i in range(6)]
    a("s_cmp_eq_u32 s3, 0")
    a("s_cbranch_scc1 L_lead")
    loader_loop(a, "LA", lds_loads, 9, False)
    a("v_mov_b32 v19, %d" % CTL)
    a("s_waitcnt vmcnt(9)")
    a("s_barrier")
    a("s_branch L_tail")
    a.label("L_lead")
    loader_loop(a, "LL", lds_loads, 9, True)
    a("v_mov_b32 v19, %d" % CTL)
    a("s_waitcnt vmcnt(9)")
    a("s_barrier")
    a("s_waitcnt lgkmcnt(0)")
    ctl_init(a)
    verdict(a, "VA", True)
    a("s_waitcnt lgkmcnt(0)")
    a("s_branch L_tail")

    a.label("L_B")
    a("s_lshl_b32 s45, s26, 3")
    a("s_add_u32 s45, s45, s27")
    a("s_lshl_b32 s68, s26, 2")
    a("s_and_b32 s69, s27, 3")
    a("s_add_u32 s68, s68, s69")
    a("v_lshrrev_b32 v5, 4, v0")
    a("v_and_b32 v4, 15, v0")
    a("v_mov_b32 v19, %d" % CTL)
    a("s_cmp_ge_u32 s3, 4")
    a("s_cbranch_scc1 L_Bcomp")
    a("v_lshlrev_b32 v6, 2, v5")
    a("v_xor_b32 v6, v6, v0")
    a("v_lshlrev_b32 v6, 4, v6")
    for n in range(1, 4):
        a("v_xor_b32 v%d, %d, v6" % (6 + n, 16 * n))
    a("s_lshl_b32 s49, s3, 9")
    a("s_add_u32 s49, s49, s45")
    a("s_lshl_b32 s50, s49, 10")
    a("v_lshrrev_b32 v10, 2, v0")
    a("v_lshlrev_b32 v10, 14, v10")
    a("v_and_b32 v11, 3, v0")
    a("v_lshl_add_u32 v10, v11, 4, v10")
    a("s_and_b32 s48, s3, 1")
    a("s_lshl_b32 s49, s48, 18")
    a("s_lshl_b32 s52, s3, 10")
    a("s_add_u32 m0, s52, %d" % MAT_LDS)
    a("s_waitcnt lgkmcnt(0)")
    stamp(a, 0)
    a("s_cmp_ge_u32 s3, 2")
    a("s_cbranch_scc1 L_mat_im")
    srd(a, S_W1, 16, 512 * 1024)
    a("buffer_load_dwordx4 v10, %s, s49 offen lds" % sr(S_W1))
    a("s_branch L_mat_done")
    a.label("L_mat_im")
    srd(a, S_W1, 18, 512 * 1024)
    a("buffer_load_dwordx4 v10, %s, s49 offen lds" % sr(S_W1))
    a.label("L_mat_done")
    srd(a, S_X, 10, 2048 * 1024)
    a("s_lshl_b32 s49, s3, 13")
    a("s_add_u32 m0, s49, %d" % X_LDS)
    for n in range(8):
        if n:
            a("s_add_u32 s50, s50, 0x10000")
            a("s_add_u32 m0, m0, 1024")
        a("buffer_load_dwordx4 v%d, %s, s50 offen lds" % (6 + (n & 3), sr(S_X)))
    a("s_waitcnt vmcnt(8)")
    a("s_barrier")
    srd(a, S_W2, 6, 512 * 3072)
    a("s_lshl_b32 s53, s27, 2")
    a("s_add_u32 s53, s53, s3")
    a("s_lshl_b32 s49, s53, 10")
    a("v_lshlrev_b32 v9, 15, v0")
    a("s_mov_b32 exec_hi, 0xffff")
    a("buffer_load_dword v248, v9, %s, s49 offen offset:384" % sr(S_W2))
    a("s_mov_b64 exec, -1")
    a("s_mov_b64 s[94:95], 0")
    ctl_init(a)
    a("s_waitcnt vmcnt(1) lgkmcnt(0)")
    a("s_barrier")
    stamp(a, 1)
    a("s_cmp_lg_u32 s3, 0")
    a("s_cbranch_scc1 L_b2")
    a("s_load_dwordx2 s[94:95], s[22:23], 0")
    publish_die(a, "LB")
    a("v_mov_b32 v24, s94")
    a("v_mov_b32 v25, s95")
    a("ds_write_b64 v19, v[24:25]")
    a.label("L_b2")
    srd(a, S_TR, 12, 2048 * 4096)
    srd(a, S_TI, 14, 2048 * 4096)
    a("s_lshl_b32 s49, s48, 2")
    a("v_or_b32 v8, s49, v3")
    a("v_xor_b32 v8, v8, v2")
    a("v_lshlrev_b32 v8, 4, v8")
    a("v_lshl_add_u32 v8, v1, 17, v8")
    a("s_lshl_b32 s49, s3, 8")
    a("s_add_u32 s49, s49, s68")
    a("s_lshl_b32 s49, s49, 12")
    a("s_add_u32 s50, s49, 0x%x" % (32 * 32 * 4096))
    a("s_add_u32 m0, s52, %d" % WS_LDS)
    for i in range(4):
        if i:
            a("s_add_u32 m0, m0, 4096")
        a("buffer_load_dwordx4 v8, %s, s%d offen lds" % (sr(S_TI if i >> 1 else S_TR), 49 + (i & 1)))
    a("v_mov_b32 v22, 1")
    a("s_waitcnt vmcnt(0)")
    a("s_mov_b64 exec, 1")
    a("ds_add_u32 v19, v22 offset:%d" % C_TW)
    a("s_mov_b64 exec, -1")
    a("s_waitcnt vmcnt(0)")
    stamp(a, 22)

    a.label("L_tail")
    a("s_lshl_b32 s68, s26, 2")
    a("s_and_b32 s69, s27, 3")
    a("s_add_u32 s68, s68, s69")
    a("s_lshr_b32 s69, s27, 2")
    srd(a, S_WO, 8, 512 * 1024)
    a("v_and_b32 v8, 1, v3")
    a("s_lshl_b32 s49, s48, 1")
    a("v_or_b32 v8, s49, v8")
    a("v_lshlrev_b32 v8, 1, v8")
    a("v_xor_b32 v8, v8, v2")
    a("v_lshlrev_b32 v8, 4, v8")
    a("s_lshl_b32 s49, s3, 3")
    a("v_add_u32 v9, s49, v1")
    a("v_lshl_add_u32 v20, v9, 10, v8")
    a("s_lshl_b32 s50, s69, 7")
    a("v_add_u32 v20, s50, v20")
    if KROT:
        a("s_lshl_b32 s93, s69, 1")
        a("s_lshl_b32 s49, s68, 2")
        a("s_add_u32 s93, s93, s49")
        a("s_and_b32 s93, s93, 15")
    else:
        a("s_mov_b32 s93, 0")
    a("s_mov_b32 m0, s52")
    a("s_lshl_b32 s54, s93, 15")
    NB7 = 2
    a("v_lshlrev_b32 v21, 7, v0")
    srd(a, S_WS, 24, WS_REC)

    a("s_cmp_lt_u32 s27, 8")
    a("s_cbranch_scc1 L_notouch")
    a("s_lshl_b32 s49, s27, 2")
    a("s_add_u32 s49, s49, s3")
    a("s_mul_i32 s49, s49, 22 * 128")
    a("s_lshl_b32 s51, s26, 18")
    a("s_add_u32 s49, s49, s51")
    a("s_add_u32 s49, s49, 0x%x" % (OF_OFF - 32 * 22 * 128))
    a("s_mov_b64 exec, 0x3fffff")
    a("buffer_load_dword v248, v21, %s, s49 offen" % sr(S_WS))
    a("s_mov_b64 exec, -1")
    a.label("L_notouch")
    for i in range(16):
        if i:
            a("s_add_u32 m0, m0, 4096")
            a("s_add_u32 s54, s54, 0x8000")
            a("s_and_b32 s54, s54, 0x7ffff")
        a("buffer_load_dwordx4 v20, %s, s54 offen lds" % sr(S_WO))
        if i == NB7 - 1:
            a("s_cmp_lt_u32 s27, 8")
            a("s_cbranch_scc1 L_no7")
            a("s_waitcnt vmcnt(%d)" % (NB7 + 1))
            a("s_barrier")
            a.label("L_no7")
        elif i >= THR:
            a("s_waitcnt vmcnt(%d)" % THR)
    srd(a, S_OUT, 20, 2048 * 2048)
    a("v_and_b32 v1, 15, v0")
    a("v_lshrrev_b32 v2, 4, v0")
    a("v_and_b32 v3, 1, v2")
    a("v_lshrrev_b32 v4, 1, v2")
    a("s_lshl_b32 s49, s68, 2")
    a("s_add_u32 s49, s49, s3")
    a("s_lshl_b32 s49, s49, 4")
    a("v_add_u32 v5, s49, v1")
    a("s_lshl_b32 s49, s68, 16")
    a("v_lshl_add_u32 v6, v2, 10, s49")
    a("v_and_b32 v7, 63, v5")
    a("v_lshl_add_u32 v6, v7, 4, v6")
    a("v_and_b32 v7, 1023, v5")
    a("v_lshrrev_b32 v8, 10, v5")
    a("v_lshl_add_u32 v7, v7, 1, v8")
    a("v_lshlrev_b32 v3, 5, v3")
    a("v_lshl_add_u32 v3, v4, 4, v3")
    a("v_add_u32 v3, s50, v3")
    a("v_lshl_add_u32 v13, v7, 11, v3")
    lane_traddr(a, 14, 8, 9, 10)
    for t in range(1, 4):
        a("v_xor_b32 v%d, %d, v14" % (14 + t, 32 * t))
    a("s_and_b32 s49, s27, 3")
    a("s_min_u32 s59, s49, 2")
    a("s_max_u32 s58, s49, 1")
    a("s_sub_u32 s58, s58, 1")
    a("s_mul_i32 s49, s26, 3")
    a("s_add_u32 s49, s49, %d" % (FLAG_OFF >> 8))
    for k in range(2):
        a("s_add_u32 s%d, s%d, s49" % (58 + k, 58 + k))
        a("s_lshl_b32 s%d, s%d, 8" % (58 + k, 58 + k))
    a("v_mov_b32 v18, s59")
    a("v_mov_b32 v12, s58")
    a("v_cmp_gt_u32 vcc, 8, v0")
    a("v_cndmask_b32 v18, v18, v12, vcc")
    a("v_and_b32 v12, 7, v0")
    a("v_lshl_add_u32 v18, v12, 3, v18")
    a("s_lshr_b32 s49, s27, 3")
    a("s_or_b32 s49, s49, s3")
    a("s_cmp_lg_u32 s49, 0")
    a("s_cbranch_scc1 L_nov")
    verdict(a, "VB", False)
    a.label("L_nov")
    a("v_mov_b32 v22, 1")
    a("s_waitcnt vmcnt(0)")
    stamp(a, 21)
    a("s_mov_b64 exec, 1")
    a("ds_add_u32 v19, v22 offset:%d" % C_STAGED)
    a("s_mov_b64 exec, -1")
    watch(a, "Gs", C_STAGED, 4)
    stamp(a, 5)
    a("ds_read_b32 v23, v19 offset:%d" % C_OBASE)
    OF, ACC, WF = 24, 88, 104
    NPRE = 9

    def rd(ks):
        return ["ds_read_b64_tr_b16 %s, v%d offset:%d" % (v(WF + 16 * (ks % NPRE) + 4 * t + 2 * hh, 2), 14 + t,
                                                          ks * 4096 + hh * 512) for t in range(4) for hh in range(2)]

    for ks in range(NPRE):
        for x in rd(ks):
            a(x)
    a("s_waitcnt lgkmcnt(0)")
    a("v_add_u32 v6, v23, v6")
    if WOPF:
        a("s_cmp_ge_u32 s27, 8")
        a("s_cbranch_scc1 L_nowopf")
        a("s_lshl_b32 s50, s53, 14")
        a("s_mov_b32 exec_lo, 0xfcfcfcfc")
        a("s_mov_b32 exec_hi, 0xfcfcfcfc")
        for k in range(2):
            a("buffer_load_dword v248, v21, %s, s50 offen" % sr(S_WO))
            a("s_add_u32 s50, s50, 8192")
            a("s_waitcnt vmcnt(0)")
        a("s_mov_b64 exec, -1")
        a.label("L_nowopf")
    stamp(a, 6)
    wait_flags(a, "G", 0, "0xffff", C_GGO)
    a("s_setprio 2")
    stamp(a, 7)
    a("s_lshl_b32 s54, s93, 12")

    def oload(c):
        if c:
            a("s_add_u32 s54, s54, 0x1000")
            a("s_and_b32 s54, s54, 0xffff")
        a("buffer_load_dwordx4 %s, v6, %s, s54 offen sc1" % (v(OF + 4 * c, 4), sr(S_WS)))

    for c in range(GI):
        oload(c)
    for ks in range(16):
        issued = min(16, GI + ks)
        if ks < NPRE:
            a("s_waitcnt vmcnt(%d)" % (issued - 1 - ks))
        else:
            a("s_waitcnt vmcnt(%d) lgkmcnt(%d)" % (issued - 1 - ks, min(15, 8 * (15 - ks))))
        if ks == 0:
            stamp(a, 8)
        rr = rd(ks + NPRE) if ks + NPRE < 16 else []
        for t in range(4):
            a(mm32(ACC + 4 * t, WF + 16 * (ks % NPRE) + 4 * t, OF + 4 * ks, ks))
            if t == 0 and GI + ks < 16:
                oload(GI + ks)
                if FWAIT and GI + ks == 15:
                    a("s_mov_b64 exec, 1")
                    a("ds_add_u32 v19, v22 offset:%d" % C_ISS)
                    a("s_mov_b64 exec, -1")
            for x in rr[2 * t:2 * t + 2]:
                a(x)
    stamp(a, 9)
    out_tiles(a, ACC, 24, [(13, 0), (13, 64)])
    stamp(a, 10)
    stamp_flush(a)
    a("s_endpgm")

    a.label("L_Acons")
    a("s_setprio 1")
    a("s_sub_u32 s48, s3, 4")
    a("s_waitcnt lgkmcnt(0)")
    Q, K, V = 32, 56, 80
    X = [104, 140]
    W = [128, 164]
    lane_xaddr(a, 4, 5, 1, 2)
    lane_traddr(a, 6, 1, 2, 3)
    a("s_lshl_b32 s49, s48, 5")
    a("v_xor_b32 v6, s49, v6")
    for r in range(32, 104):
        a("v_mov_b32 v%d, 0" % r)

    a("v_and_b32 v1, 15, v0")
    a("v_lshrrev_b32 v2, 4, v0")
    a("v_lshlrev_b32 v3, 2, v2")
    a("v_sub_u32 v3, v1, v3")
    a("v_mov_b32 v7, 0xf149f2ca")
    a("v_mov_b32 v16, 0")
    a("v_mov_b32 v17, 0")
    a("s_mov_b32 s56, 0xffff")
    a("s_mov_b32 s57, 0xffff0000")
    for r in range(4):
        a("v_subrev_u32 v22, %d, v3" % r)
        a("v_cmp_gt_u32 vcc, 8, v22")
        a("v_mov_b32 v25, s%d" % (56 + (r & 1)))
        a("v_add_u32 v22, 16, v22")
        a("v_cndmask_b32 v%d, v7, v32, vcc" % (8 + r))
        a("v_cndmask_b32 v25, v32, v25, vcc")
        a("v_cmp_gt_u32 vcc, 8, v22")
        a("v_or_b32 v%d, v%d, v25" % (16 + (r >> 1), 16 + (r >> 1)))
        a("v_cndmask_b32 v%d, v7, v32, vcc" % (12 + r))
    a("v_not_b32 v18, v16")
    a("v_not_b32 v19, v17")
    a("v_mov_b32 v20, 0x3f803f80")
    a("v_mov_b32 v21, 0x3f803f80")
    a("s_lshl_b32 s49, s46, 10")
    a("s_add_u32 s49, s49, s47")
    a("v_and_b32 v22, 31, v0")
    a("v_add_u32 v28, s49, v22")
    a("s_lshl_b32 s49, s44, 2")
    a("s_add_u32 s49, s49, s48")
    a("s_lshl_b32 s49, s49, 11")
    a("v_lshrrev_b32 v23, 5, v0")
    a("v_lshl_add_u32 v29, v23, 10, s49")
    for p, d in enumerate((27, 26, 25)):
        if p:
            a("v_add_u32 v28, 32, v28")
        a("v_lshrrev_b32 v23, 6, v28")
        a("v_lshl_add_u32 v%d, v23, 16, v29" % d)
        a("v_and_b32 v23, 63, v28")
        a("v_lshl_add_u32 v%d, v23, 4, v%d" % (d, d))
    a("s_cmp_eq_u32 s45, 0")
    a("s_cselect_b32 s49, 16, 8")
    a("s_cmp_eq_u32 s47, 0")
    a("s_cselect_b32 s49, 0, s49")
    a("s_cselect_b32 s51, 16, 32")
    a("v_mov_b32 v23, 0x80000000")
    a("v_cmp_gt_u32 vcc, s49, v22")
    a("v_cndmask_b32 v27, v27, v23, vcc")
    a("v_cmp_gt_u32 vcc, s51, v22")
    a("v_cndmask_b32 v25, v23, v25, vcc")
    a("v_mov_b32 v7, %d" % CTL)
    srd(a, S_WS, 24, WS_REC)
    srd(a, S_OF, 24, 0)
    srd(a, S_OS, 24, 0)
    a("s_mul_i32 s73, s26, 3")
    a("s_add_u32 s73, s73, s45")
    a("s_lshl_b32 s73, s73, 8")
    a("s_lshl_b32 s74, s44, 3")
    a("s_add_u32 s73, s73, s74")
    a("s_mov_b32 s56, 0x3eb8aa3b")
    a("s_mov_b32 s57, 0x3eb8aa3b")
    a("s_mov_b32 s58, 0x%x" % OF_OFF)

    def readsA(st, kk):
        r = []
        for t in range(3):
            for hh in range(2):
                r.append("ds_read_b64_tr_b16 %s, v6 offset:%d" % (v(W[st] + 4 * t + 2 * hh, 2),
                                                                 12288 + t * 8192 + kk * 4096 + hh * 512))
        for rt in range(6):
            r.append("ds_read_b128 %s, v%d offset:%d" % (v(X[st] + 4 * rt, 4), 4 + kk, rt * 2048))
        return r

    def mfmaA(st):
        m = []
        for rt in range(6):
            m.append(mm32(Q + 4 * rt, W[st], X[st] + 4 * rt, 1))
            m.append(mm32(K + 4 * rt, W[st] + 4, X[st] + 4 * rt, 1))
            m.append(mm32(V + 4 * rt, X[st] + 4 * rt, W[st] + 8, 1))
        return m

    main_loop(a, "A", mfmaA, readsA, [4, 6, 5], 5, 8, 8)
    e = ["v_readfirstlane_b32 s%d, v22" % (S_OF + 2), "v_readfirstlane_b32 s%d, v23" % (S_OS + 2)]
    Qp, Kp, Vp, T, M = 176, 188, 200, 212, 236
    Sc, Sp, Oa, Sm = Q, K, V, K
    for b in range(6):
        for (src, dst) in ((Q, Qp), (K, Kp), (V, Vp)):
            e.append(cv(dst + 2 * b, v(src + 4 * b), v(src + 4 * b + 1)))
            e.append(cv(dst + 2 * b + 1, v(src + 4 * b + 2), v(src + 4 * b + 3)))
    for b in range(6):
        e.append("v_mfma_f32_16x16x16_bf16 %s, %s, %s, v[8:11]" % (v(Sc + 4 * b, 4), v(Kp + 2 * b, 2), v(Qp + 2 * b, 2)))
        if b:
            e.append("v_mfma_f32_16x16x16_bf16 %s, %s, %s, v[12:15]" % (v(Sp + 4 * b, 4), v(Kp + 2 * b - 2, 2), v(Qp + 2 * b, 2)))
            for r in range(4):
                e.append("v_max_f32 v%d, v%d, v%d" % (Sc + 4 * b + r, Sc + 4 * b + r, Sp + 4 * b + r))
        for r in range(4):
            e.append(cv(Sc + 4 * b + r, "0", v(Sc + 4 * b + r)))
        m = M + 4 * (b >> 1) + (b & 1)
        e.append("v_max3_f32 v%d, v%d, v%d, v%d" % (m, Sc + 4 * b, Sc + 4 * b + 1, Sc + 4 * b + 2))
        e.append("v_max_f32 v%d, v%d, v%d" % (m, m, Sc + 4 * b + 3))
    for p in range(3):
        m = M + 4 * p
        e.append("v_permlane32_swap_b32 v%d, v%d" % (m, m + 1))
        e.append("v_max_f32 v%d, v%d, v%d" % (m, m, m + 1))
        e.append("v_mov_b32 v%d, v%d" % (m + 1, m))
        e.append("v_permlane16_swap_b32 v%d, v%d" % (m, m + 1))
        e.append("v_max_f32 v%d, v%d, v%d" % (m, m, m + 1))
        e.append("v_mul_f32 v%d, s56, v%d" % (m + 2, m))
        e.append("v_mul_f32 v%d, s56, v%d" % (m + 3, m))
        e.append("v_permlane32_swap_b32 v%d, v%d" % (m + 2, m + 3))
    for b in range(6):
        m = M + 4 * (b >> 1) + 2
        for h2 in range(2):
            d = v(Sc + 4 * b + 2 * h2, 2)
            e.append("v_pk_fma_f32 %s, %s, s[56:57], %s op_sel:[0,0,%d] op_sel_hi:[1,1,%d] neg_lo:[0,0,1] neg_hi:[0,0,1]"
                     % (d, d, v(m, 2), b & 1, b & 1))
        for r in range(4):
            e.append("v_exp_f32 v%d, v%d" % (Sc + 4 * b + r, Sc + 4 * b + r))
        e.append(cv(T + 4 * b + 2, v(Sc + 4 * b), v(Sc + 4 * b + 1)))
        e.append(cv(T + 4 * b + 3, v(Sc + 4 * b + 2), v(Sc + 4 * b + 3)))
        e.append("v_mfma_f32_16x16x16_bf16 %s, v[20:21], %s, 0" % (v(Sm + 4 * b, 4), v(T + 4 * b + 2, 2)))
        if b == 0:
            e.append("v_mfma_f32_16x16x16_bf16 %s, %s, %s, 0" % (v(Oa, 4), v(Vp, 2), v(T + 2, 2)))
        else:
            e.append("v_and_b32 v%d, v18, v%d" % (T + 4 * b, T + 4 * b + 2))
            e.append("v_and_b32 v%d, v19, v%d" % (T + 4 * b + 1, T + 4 * b + 3))
            e.append("v_and_b32 v%d, v16, v%d" % (T + 4 * b + 2, T + 4 * b + 2))
            e.append("v_and_b32 v%d, v17, v%d" % (T + 4 * b + 3, T + 4 * b + 3))
            e.append(mm32(Oa + 4 * b, Vp + 2 * b - 2, T + 4 * b, 0))
        e.append("v_rcp_f32 v%d, v%d" % (Sm + 4 * b, Sm + 4 * b))
        for h2 in range(2):
            d = v(Oa + 4 * b + 2 * h2, 2)
            e.append("v_pk_mul_f32 %s, %s, %s op_sel_hi:[1,0]" % (d, d, v(Sm + 4 * b, 2)))
        o = Sc + 8 * (b >> 1) + 2 * (b & 1)
        e.append(cv(o, v(Oa + 4 * b), v(Oa + 4 * b + 1)))
        e.append(cv(o + 1, v(Oa + 4 * b + 2), v(Oa + 4 * b + 3)))
        if b & 1:
            p = b >> 1
            o = Sc + 8 * p
            e.append("v_permlane16_swap_b32 v%d, v%d" % (o, o + 2))
            e.append("v_permlane16_swap_b32 v%d, v%d" % (o + 1, o + 3))
            for sd, so, fl in ((S_OF, "s58", ""), (S_OS, "0", " sc1")):
                e.append("buffer_store_dwordx4 %s, v%d, %s, %s offen%s" % (v(o, 4), (27, 26, 25)[p], sr(sd), so, fl))
    tail_region(a, mfmaA, readsA(1, 1) + ["ds_read_b64 v[22:23], v7 offset:%d" % C_SIZES], e, "A")
    stamp(a, 3)
    a("v_mov_b32 v19, %d" % CTL)
    a("ds_read_b64 v[22:23], v19")
    signal(a, "A", 3, "1", [(S_OF, ""), (S_OS, " sc1")])
    stamp_flush(a)
    a("s_endpgm")

    a.label("L_Bcomp")
    if CODEPF:
        a("s_getpc_b64 s[62:63]")
        a.label("L_pc")
        a("s_sub_u32 s62, s62, L_pc-L_entry")
        a("s_subb_u32 s63, s63, 0")
        a("s_lshl_b32 s49, s27, 2")
        a("s_add_u32 s49, s49, s3")
        a("s_sub_u32 s49, s49, 4")
        a("s_lshl_b32 s49, s49, 7")
        a("v_lshl_add_u32 v6, v0, 12, s49")
        a("v_min_u32 v6, L_end-L_entry, v6")
        a("s_mov_b64 exec, 0x3f")
        a("global_load_dword v248, v6, s[62:63]")
        a("s_mov_b64 exec, -1")
    a("s_lshl_b32 s49, s2, 3")
    a("s_add_u32 s49, s49, s3")
    a("s_cmp_lg_u32 s49, 7")
    a("s_cbranch_scc1 L_notag")
    a("s_memrealtime s[64:65]")
    a("v_mov_b32 v32, 0")
    a("s_waitcnt lgkmcnt(0)")
    srd(a, S_DBG, 22, 256)
    a("s_or_b32 s65, s65, 0x40000000")
    a("v_mov_b32 v30, s64")
    a("v_mov_b32 v31, s65")
    a("s_mov_b64 exec, 1")
    a("buffer_store_dwordx2 v[30:31], v32, %s, 0 offen sc1" % sr(S_DBG))
    a("s_mov_b64 exec, -1")
    a.label("L_notag")
    a("s_setprio 1")
    a("s_and_b32 s46, s3, 3")
    a("v_lshrrev_b32 v7, 2, v4")
    a("v_and_b32 v8, 3, v4")
    a("v_lshl_add_u32 v9, v5, 3, v7")
    a("v_lshlrev_b32 v9, 10, v9")
    a("v_lshl_add_u32 v9, v8, 8, v9")
    a("v_lshl_add_u32 v7, v8, 2, v7")
    a("s_lshr_b32 s49, s46, 1")
    a("v_xor_b32 v7, s49, v7")
    a("v_lshl_add_u32 v9, v7, 4, v9")
    a("s_and_b32 s49, s46, 1")
    a("s_lshl_b32 s49, s49, 3")
    a("s_add_u32 s49, s49, %d" % X_LDS)
    a("v_add_u32 v8, s49, v9")
    for u in range(1, 8):
        a("v_xor_b32 v%d, %d, v8" % (8 + u, 32 * u))
    a("v_lshlrev_b32 v21, 6, v4")
    a("v_lshl_add_u32 v21, v5, 4, v21")
    a("v_add_u32 v16, %d, v21" % MAT_LDS)
    a("v_lshlrev_b32 v18, 7, v4")
    a("v_lshl_add_u32 v18, v5, 3, v18")
    a("v_add_u32 v18, %d, v18" % MAT_LDS)
    a("v_mul_u32_u24 v20, %d, v4" % E_STR)
    a("v_lshl_add_u32 v20, v5, 8, v20")
    a("s_lshl_b32 s49, s46, 4")
    a("s_add_u32 s49, s49, %d" % E_LDS)
    a("v_add_u32 v20, s49, v20")
    a("s_mul_i32 s49, s46, %d" % (4 * E_STR))
    a("s_add_u32 s49, s49, %d" % E_LDS)
    a("v_add_u32 v21, s49, v21")
    TWR, TWI = 160, 192
    a("v_lshlrev_b32 v6, 2, v5")
    a("v_cvt_f32_u32 v6, v6")
    a("s_lshl_b32 s50, s46, 2")
    a("v_cvt_f32_u32 v7, s50")
    for r in range(4):
        a("v_add_f32 v%d, %s, v7" % (24 + r, ("0", "1.0", "2.0", "0x40400000")[r]))
        a("v_mul_f32 v%d, 0xbb000000, v%d" % (24 + r, 24 + r))
    import struct
    for h in range(2):
        for q in range(4):
            a("v_add_f32 v7, 0x%x, v6" % struct.unpack("<I", struct.pack("<f", 16.0 * h + q))[0])
            for r in range(4):
                a("v_mul_f32 v%d, v7, v%d" % (28 + r, 24 + r))
            for r in range(4):
                a("v_cos_f32 v%d, v%d" % (TWR + 16 * h + 4 * r + q, 28 + r))
                a("v_sin_f32 v%d, v%d" % (TWI + 16 * h + 4 * r + q, 28 + r))
    a("s_mov_b32 s58, 0x80008000")
    a("s_mov_b32 s56, 0x00010001")
    a("s_mov_b32 s57, 0x00010001")
    a("v_mov_b32 v23, 0xbf003f00")
    a("v_mov_b32 v22, 0x3f003f00")
    a("v_and_b32 v6, 7, v4")
    a("v_xor_b32 v6, v6, v5")
    a("v_lshlrev_b32 v6, 4, v6")
    a("v_lshl_add_u32 v6, v4, 7, v6")
    a("s_lshl_b32 s49, s46, 13")
    a("s_add_u32 s49, s49, %d" % X_LDS)
    a("v_add_u32 v6, s49, v6")
    a("v_xor_b32 v7, 64, v6")
    a("v_xor_b32 v17, v1, v2")
    a("v_lshlrev_b32 v17, 4, v17")
    a("v_lshl_add_u32 v17, v1, 7, v17")
    a("v_add_u32 v17, s49, v17")
    a("v_lshlrev_b32 v3, 4, v0")
    a("s_lshl_b32 s49, s46, 8")
    a("s_add_u32 s49, s49, s45")
    a("s_mul_i32 s64, s49, %d" % U_ROW)
    a("s_add_u32 s64, s64, 0x%x" % U_OFF)
    for k in range(1, 4):
        a("s_add_u32 s%d, s64, %d" % (64 + k, 64 * U_ROW * k))
    a("s_mov_b32 s62, s64")
    a("s_cmp_eq_u32 s46, 0")
    a("s_cmov_b32 s64, 0x40000000")
    a("s_lshr_b32 s73, s45, 4")
    a("s_add_u32 s73, s73, 24")
    a("s_lshl_b32 s73, s73, 8")
    a("s_and_b32 s74, s45, 15")
    a("s_lshl_b32 s74, s74, 3")
    a("s_add_u32 s73, s73, s74")
    a("s_waitcnt lgkmcnt(0)")
    srd(a, S_WS, 24, WS_REC)
    stamp(a, 0)
    XF, D0, PP = 32, 64, 128
    CH, IH, NH, I0, C0, TRE, TN = (224, 240), (232, 244), (236, 252), 228, 156, 24, 26
    a("s_barrier")
    for h in range(2):
        a("ds_read_b128 %s, v16 offset:%d" % (v(CH[h], 4), 1024 * h))
        a("ds_read_b128 %s, v16 offset:%d" % (v(IH[h], 4), 2048 + 1024 * h))
    a("ds_read_b64 v[24:25], v18")
    a("ds_read_b64 v[26:27], v18 offset:2048")
    a("s_waitcnt lgkmcnt(0)")
    for r in range(4):
        a("v_cndmask_b32 v%d, v%d, v23, s[56:57]" % (I0 + r, IH[0] + r))
        a("v_cndmask_b32 v%d, v%d, v22, s[56:57]" % (C0 + r, CH[0] + r))
        for h in range(2):
            a("v_xor_b32 v%d, s58, v%d" % (NH[h] + r, IH[h] + r))
    for r in range(2):
        a("v_xor_b32 v%d, s58, v%d" % (26 + r, 26 + r))
        a("v_xor_b32 v%d, s58, v%d" % (28 + r, 24 + r))
    a("s_barrier")
    stamp(a, 1)
    for u in range(8):
        for hh in range(2):
            a("ds_read_b64_tr_b16 %s, v%d offset:%d" % (v(XF + 4 * u + 2 * hh, 2), 8 + u, 4096 * hh))
    for u in range(4):
        a("s_waitcnt lgkmcnt(%d)" % (14 - 2 * u))
        a(mm32(D0 + 4 * u, XF + 4 * u, C0, 0))
        a(mm32(D0 + 32 + 4 * u, XF + 4 * u, I0, 0))
    a("s_waitcnt lgkmcnt(0)")
    e = []
    for u in range(4, 8):
        e.append(mm32(D0 + 4 * u, XF + 4 * u, C0, 0))
        e.append(mm32(D0 + 32 + 4 * u, XF + 4 * u, I0, 0))
    for c in range(2):
        for j in range(4):
            for r in range(4):
                e.append(cv(PP + 8 * r + 4 * c + j, v(D0 + 32 * c + 8 * j + r), v(D0 + 32 * c + 8 * j + 4 + r)))
    for h in range(2):
        for r in range(4):
            re, im = D0 + 32 * h + 8 * r, D0 + 32 * h + 8 * r + 4
            e.append(mm32(re, CH[h], PP + 8 * r, 0))
            e.append(mm32(re, NH[h], PP + 8 * r + 4, 1))
            e.append(mm32(im, IH[h], PP + 8 * r, 0))
            e.append(mm32(im, CH[h], PP + 8 * r + 4, 1))
            t, wr, wi = XF + 16 * h + 4 * r, TWR + 16 * h + 4 * r, TWI + 16 * h + 4 * r
            if h == 0 or not TWPK:
                for q in range(4):
                    e.append("v_mul_f32 v%d, v%d, v%d" % (t + q, re + q, wr + q))
                    e.append("v_fma_f32 v%d, -v%d, v%d, v%d" % (t + q, im + q, wi + q, t + q))
                    e.append("v_mul_f32 v%d, v%d, v%d" % (im + q, im + q, wr + q))
                    e.append("v_fmac_f32 v%d, v%d, v%d" % (im + q, re + q, wi + q))
            else:
                for q in (0, 2):
                    e.append("v_pk_mul_f32 %s, %s, %s" % (v(t + q, 2), v(re + q, 2), v(wr + q, 2)))
                    e.append("v_pk_fma_f32 %s, %s, %s, %s neg_lo:[1,0,0] neg_hi:[1,0,0]" % (v(t + q, 2), v(im + q, 2), v(wi + q, 2), v(t + q, 2)))
                    e.append("v_pk_mul_f32 %s, %s, %s" % (v(im + q, 2), v(im + q, 2), v(wr + q, 2)))
                    e.append("v_pk_fma_f32 %s, %s, %s, %s" % (v(im + q, 2), v(re + q, 2), v(wi + q, 2), v(im + q, 2)))
        for q in range(4):
            d = (8, 12)[q & 1] if h == 0 else PP + 4 * q
            for c in range(2):
                src = (lambda r: XF + 16 * h + 4 * r + q) if c == 0 else (lambda r: D0 + 32 * h + 8 * r + 4 + q)
                e.append(cv(d + 2 * c, v(src(0)), v(src(1))))
                e.append(cv(d + 2 * c + 1, v(src(2)), v(src(3))))
            e.append("ds_write_b128 v20, %s offset:%d" % (v(d, 4), 1024 * h + 64 * q))
    order, t = schedule(e)
    sys.stderr.write("B step 1: %d instructions, model %d cycles\n" % (len(order), t))
    for x in order:
        a(x)
    a("v_mov_b32 v22, 1")
    a("s_mov_b64 exec, 1")
    a("ds_add_u32 v19, v22 offset:%d" % C_ISS)
    a("s_mov_b64 exec, -1")
    stamp(a, 5)
    watch(a, "Bx", C_ISS, 4, 22, 0)
    stamp(a, 2)
    for k in range(8):
        a("ds_read_b128 %s, v21 offset:%d" % (v(XF + 4 * k, 4), (k >> 1) * E_STR + (k & 1) * 1024))
    OUTR = 160

    def ustore(kk):
        a("buffer_store_dwordx4 %s, v3, %s, s%d offen offset:%d sc1" % (v(OUTR + 4 * kk, 4), sr(S_WS), 64 + (kk >> 1), 1024 * (kk & 1)))

    for k in range(10):
        if k in (0, 2):
            a("s_waitcnt lgkmcnt(%d)" % (6 if k == 0 else 0))
        c = [cv(PP + 4 * (k - 2) + r, v(D0 + 8 * (k - 2) + r), v(D0 + 8 * (k - 2) + 4 + r)) for r in range(4)] if k >= 2 else []
        if k < 8:
            a(mm32(D0 + 8 * k, XF + 4 * k, TRE, 0))
        for x in c[:2]:
            a(x)
        if k < 8:
            a(mm32(D0 + 8 * k + 4, XF + 4 * k, TN, 0))
        for x in c[2:]:
            a(x)
        if k >= 2:
            j = k - 2
            a("ds_write_b128 v%d, %s offset:%d" % (6 + (j & 1), v(PP + 4 * j, 4), (j >> 1) * 2048))
            if j & 1:
                for kk in (j - 1, j):
                    a("ds_read_b128 %s, v17 offset:%d" % (v(OUTR + 4 * kk, 4), 1024 * kk))
                if j > 1:
                    a("s_waitcnt lgkmcnt(4)")
                    if "--fine" in OPT:
                        stamp(a, 12 + j)
                    ustore(j - 3)
                    ustore(j - 2)
                    if "--fine" in OPT:
                        stamp(a, 13 + j)
    a("s_waitcnt lgkmcnt(0)")
    ustore(6)
    ustore(7)
    if "--fine" in OPT:
        stamp(a, 21)
    a("s_mov_b64 exec, 1")
    for k in range(4):
        a("buffer_store_dword v%d, v3, %s, s%d offen offset:2048 sc1" % (OUTR + 8 * k, sr(S_WS), 64 + k))
    a("s_mov_b64 exec, -1")
    stamp(a, 3)

    a.label("L_F")
    a("s_cmp_lg_u32 s46, 0")
    a("s_cbranch_scc1 L_nomix1")
    MG, MH, UA, UB = 192, 200, 204, 212
    a("v_xor_b32 v20, 0x380, v17")
    a("v_sub_u32 v21, 0, v0")
    a("v_and_b32 v21, 63, v21")
    a("v_lshrrev_b32 v3, 3, v21")
    a("v_and_b32 v21, 7, v21")
    a("v_xor_b32 v21, v21, v3")
    a("v_lshlrev_b32 v21, 4, v21")
    a("v_lshl_add_u32 v21, v3, 7, v21")
    a("v_cmp_eq_u32 vcc, 0, v0")
    a("v_mov_b32 v3, 1024")
    a("v_cndmask_b32 v3, v3, v0, vcc")
    a("v_add3_u32 v21, v21, v3, s49" if False else "v_add_u32 v21, v21, v3")
    a("v_add_u32 v21, %d, v21" % X_LDS)
    a("v_xor_b32 v3, 1024, v21")
    for k in range(2):
        a("ds_read_b128 %s, v20 offset:%d" % (v(MG + 4 * k, 4), 1024 * (1 - k)))
        a("ds_read_b32 v%d, v%d" % (MH + k, (21, 3)[k]))
    a("v_lshlrev_b32 v3, 4, v0")
    a("s_mov_b32 s58, 0xffff0000")
    a("s_add_u32 s63, s62, %d" % (16 * 64 * U_ROW))
    a("s_waitcnt lgkmcnt(0)")
    for k in range(2):
        for r in range(4):
            g_, m_ = 160 + 4 * k + r, (MH + k if r == 0 else MG + 4 * k + 4 - r)
            a("v_lshlrev_b32 v220, 16, v%d" % g_)
            a("v_lshlrev_b32 v221, 16, v%d" % m_)
            a("v_and_b32 v222, s58, v%d" % g_)
            a("v_and_b32 v223, s58, v%d" % m_)
            a("v_add_f32 v224, v220, v221")
            a("v_sub_f32 v225, v222, v223")
            a("v_add_f32 v226, v222, v223")
            a("v_sub_f32 v227, v220, v221")
            a(cv(UA + 4 * k + r, "v224", "v225"))
            a(cv(UB + 4 * k + r, "-v226", "v227"))
        a("buffer_store_dwordx4 %s, v3, %s, s62 offen offset:%d sc1" % (v(UA + 4 * k, 4), sr(S_WS), 1024 * k))
        a("buffer_store_dwordx4 %s, v3, %s, s63 offen offset:%d sc1" % (v(UB + 4 * k, 4), sr(S_WS), 1024 * k))
    a("s_waitcnt vmcnt(4)")
    a("s_branch L_sig")
    a.label("L_nomix1")
    a("s_waitcnt vmcnt(0)")
    a.label("L_sig")
    watch(a, "Bt", 4, 1, 23)
    a("ds_read_b32 v22, v19")
    signal(a, "B", 3, "0xff", [(S_WS, " sc1")], False)
    a("s_cmp_lg_u32 s46, 0")
    a("s_cbranch_scc1 L_nomix")
    a("s_add_u32 s73, s73, %d" % (MIX_LINES * 256))
    a("s_waitcnt vmcnt(0)")
    a("s_mov_b64 exec, 3")
    a("buffer_store_dwordx2 v[22:23], v16, %s, s73 offen sc1" % sr(S_WS))
    a("s_mov_b64 exec, -1")
    a.label("L_nomix")
    a("v_lshrrev_b32 v3, 1, v5")
    a("v_lshrrev_b32 v6, 1, v4")
    a("v_xor_b32 v6, v6, v3")
    a("v_lshlrev_b32 v6, 4, v6")
    a("v_lshl_add_u32 v6, v4, 7, v6")
    a("v_and_b32 v15, 1, v5")
    a("v_lshl_add_u32 v6, v15, 3, v6")
    a("v_add_u32 v6, %d, v6" % WS_LDS)
    for c in range(1, 4):
        a("v_xor_b32 v%d, %d, v6" % (6 + c, 32 * c))
    L, TW, ACC, FQ = 24, 88, 152, 216
    watch(a, "Fs", C_TW, 4)
    for rho in range(4):
        for c in range(4):
            a("ds_read_b64 %s, v%d offset:%d" % (v(L + 16 * rho + 4 * c, 2), 6 + c, rho * 2048))
            a("ds_read_b64 %s, v%d offset:%d" % (v(L + 16 * rho + 4 * c + 2, 2), 6 + c, 8192 + rho * 2048))
    a("s_mov_b32 s56, 0x05040100")
    a("s_mov_b32 s57, 0x07060302")
    a("s_mov_b32 s59, 0x80000000")
    a("s_sub_u32 s49, 32, s68")
    a("s_min_u32 s60, s49, s68")
    a("s_lshr_b32 s69, s27, 2")
    a("s_lshl_b32 s52, s69, 2")
    a("s_add_u32 s52, s52, s3")
    a("s_sub_u32 s52, s52, 4")
    a("v_mul_u32_u24 v12, %d, v5" % (4 * U_ROW))
    a("s_mul_i32 s53, s60, %d" % (64 * U_ROW))
    a("s_add_u32 s53, s53, 0x%x" % U_OFF)
    a("v_add_u32 v12, s53, v12")
    a("s_lshl_b32 s49, s52, 8")
    a("v_lshl_add_u32 v10, v4, 4, s49")
    a("v_sub_u32 v11, %d, v10" % (509 * 4))
    a("v_add_u32 v10, v12, v10")
    a("v_add_u32 v11, v12, v11")
    a("s_lshl_b32 s49, s26, 10")
    a("s_lshl_b32 s51, s26, 8")
    a("s_add_u32 s51, s51, %d" % (MIX_LINES * 256))
    a("s_and_b32 s61, s68, 15")
    a("s_cselect_b32 s49, s49, s51")
    a("s_add_u32 s49, s49, 0x%x" % (24 * 256 + FLAG_OFF))
    a("v_lshl_add_u32 v18, v5, 8, s49")
    a("v_lshl_add_u32 v18, v4, 3, v18")
    srd(a, S_OUT, 20, 2048 * 2048)
    a("v_lshl_add_u32 v13, v1, 5, s68")
    a("v_lshlrev_b32 v13, 11, v13")
    a("v_lshl_add_u32 v13, v2, 4, v13")
    a("v_and_b32 v14, 7, v4")
    a("v_lshlrev_b32 v15, 1, v5")
    a("v_xor_b32 v14, v14, v15")
    a("v_lshlrev_b32 v14, 4, v14")
    a("v_lshl_add_u32 v14, v4, 7, v14")
    a("s_lshl_b32 s49, s46, 13")
    a("s_add_u32 s49, s49, %d" % X_LDS)
    a("v_add_u32 v14, s49, v14")
    a("v_xor_b32 v15, 16, v14")
    a("s_lshl_b32 s49, s52, 7")
    a("s_add_u32 s49, s49, 1024")
    a("v_add_u32 v13, s49, v13")
    a("s_waitcnt lgkmcnt(0)")
    for k in range(16):
        for j in range(4):
            a("v_perm_b32 v%d, v%d, v%d, s%d" % (TW + 4 * k + j, L + 4 * k + 2 + (j >> 1), L + 4 * k + (j >> 1), 56 + (j & 1)))
    a("v_readfirstlane_b32 s94, v22")
    a("v_readfirstlane_b32 s95, v23")
    stamp(a, 6)
    wait_flags(a, "F", 5, "-1", C_FGO, RPIPE)
    stamp(a, 7)

    def floads(mirror, c):
        for j in range(4):
            a("s_mov_b32 s54, %d" % ((16 * c + j) * U_ROW))
            a("buffer_load_dwordx4 %s, v%d, %s, s54 offen sc1" % (v(L + 16 * c + 4 * j, 4), 10 + mirror, sr(S_WS)))

    def fpass(mirror):
        def moves(c):
            f = FQ + 16 * (c & 1)
            if mirror:
                return ["v_xor_b32 v%d, s59, v%d" % (f + 4 * r + j, L + 16 * c + 4 * j + 3 - r) for r in range(4) for j in range(4)]
            return ["v_mov_b32 v%d, v%d" % (f + 4 * r + j, L + 16 * c + 4 * j + r) for r in range(4) for j in range(4)]

        for c in range(4):
            floads(mirror, c)
        a("s_waitcnt vmcnt(12)")
        for x in moves(0):
            a(x)
        for c in range(4):
            mv = moves(c + 1) if c < 3 else []
            k = 0
            for r in range(4):
                for rho in range(4):
                    if k == 8 and mv:
                        a("s_waitcnt vmcnt(%d)" % (8 - 4 * c))
                    a(mm32(ACC + 16 * rho + 4 * r, FQ + 16 * (c & 1) + 4 * r, TW + 16 * rho + 4 * c, c))
                    if k >= 8:
                        for x in mv[2 * (k - 8):2 * (k - 8) + 2]:
                            a(x)
                    k += 1

    a("s_cmp_gt_u32 s68, 16")
    a("s_cbranch_scc1 L_fm")
    fpass(0)
    a("s_branch L_fo")
    a.label("L_fm")
    fpass(1)
    a.label("L_fo")
    stamp(a, 9)
    if FWAIT:
        watch(a, "Fg", C_ISS, 8)
    for rho in range(4):
        for q in range(4):
            for k in range(2):
                a(cv(L + 8 * rho + 2 * q + k, v(ACC + 16 * rho + 8 * k + q), v(ACC + 16 * rho + 8 * k + 4 + q)))
        for k in range(2):
            a("ds_write_b128 v%d, %s offset:%d" % (14 + k, v(L + 8 * rho + 4 * k, 4), 2048 * rho))
        for k in range(2):
            a("ds_read_b128 %s, v17 offset:%d" % (v(TW + 8 * rho + 4 * k, 4), 2048 * rho + 1024 * k))
        if rho:
            a("s_waitcnt lgkmcnt(4)")
            for k in range(2):
                a("s_mov_b32 s54, %d" % ((2 * rho - 2 + k) << 19))
                a("buffer_store_dwordx4 %s, v13, %s, s54 offen" % (v(TW + 8 * rho - 8 + 4 * k, 4), sr(S_OUT)))
    a("s_waitcnt lgkmcnt(0)")
    for k in range(2):
        a("s_mov_b32 s54, %d" % ((6 + k) << 19))
        a("buffer_store_dwordx4 %s, v13, %s, s54 offen" % (v(TW + 24 + 4 * k, 4), sr(S_OUT)))
    stamp(a, 10)
    stamp_flush(a)
    a.label("L_end")
    a("s_endpgm")
    return a.finish()


def kd(name, vgpr, sgpr=102):
    acc = (vgpr + 3) // 4 * 4
    return """.amdhsa_kernel %s
  .amdhsa_next_free_vgpr %d
  .amdhsa_next_free_sgpr %d
  .amdhsa_accum_offset %d
  .amdhsa_group_segment_fixed_size 0
  .amdhsa_kernarg_size 88
  .amdhsa_user_sgpr_count 2
  .amdhsa_user_sgpr_kernarg_segment_ptr 1
  .amdhsa_system_sgpr_workgroup_id_x 1
.end_amdhsa_kernel
""" % (name, vgpr, sgpr, acc)


def main():
    k = NAME + "_kernel"
    head = open(os.path.join(os.path.dirname(os.path.abspath(__file__)), "header.txt")).read()
    out = head
    out += "; @launch grid=(256,1,1) block=(512,1,1) lds=%d\n" % LDS_BYTES
    out += '.amdgcn_target "amdgcn-amd-amdhsa--gfx950"\n.text\n'
    out += ".globl %s\n.p2align 8\n.type %s,@function\n%s:\n" % (k, k, k) + kernel()
    out += '.section .rodata,"a"\n'
    out += ".p2align 6\n" + kd(k, 256)
    dst = [x for x in sys.argv[1:] if not x.startswith("--")]
    open(dst[0] if dst else "cdna_kernels/%s.s" % NAME, "w").write(out)


if __name__ == "__main__":
    main()
```
